```python
import torch

def _softmax(x, axis=-1):
    return torch.softmax(x, dim=axis)
def _gelu(x):
    return torch.nn.functional.gelu(x, approximate="tanh")
def _silu(x):
    return torch.nn.functional.silu(x)
def _sigmoid(x):
    return torch.sigmoid(x)
def _layernorm(x, axis=-1, eps=1e-5):
    m = x.mean(dim=axis, keepdim=True)
    v = x.var(dim=axis, keepdim=True, unbiased=False)
    return (x - m) / torch.sqrt(v + eps)
def _scatter_add(tgt, idx, src, axis=0):
    return tgt.clone().index_add_(axis, idx, src)
def _segment_sum(src, seg, n):
    out = torch.zeros((n,) + src.shape[1:], dtype=src.dtype)
    return out.index_add_(0, seg, src)
def _pad(x, pw):
    flat = tuple(v for pair in reversed(pw) for v in pair)
    return torch.nn.functional.pad(x, flat)

kernel_name = 'standalone__gqa_softmax__near_ridge'

def setup_inputs():

    _w = (lambda a: (lambda t: t.to(torch.bfloat16) if t.is_floating_point() else t)(torch.as_tensor(a)))
    B, Hq, Hkv, Sq, Sk, D = 64, 32, 8, 256, 256, 128
    return {
        "q": _w((lambda *s: torch.randn(*s, dtype=torch.bfloat16) * 0.8)(B, Hq, Sq, D)),
        "k": _w((lambda *s: torch.randn(*s, dtype=torch.bfloat16) * 0.8)(B, Hkv, Sk, D)),
        "v": _w((lambda *s: torch.randn(*s, dtype=torch.bfloat16) * 0.05)(B, Hkv, Sk, D)),
    }

def reference(q, k, v):
    B, Hq, Sq, D = q.shape
    Hkv = k.shape[1]
    rep = Hq // Hkv
    k = (lambda x, n, axis: torch.repeat_interleave(x, n, dim=axis))(k, rep, axis=1)
    v = (lambda x, n, axis: torch.repeat_interleave(x, n, dim=axis))(v, rep, axis=1)
    scale = D ** -0.5
    scores = torch.einsum("bhqd,bhkd->bhqk", q, k) * scale
    p = _softmax(scores, axis=-1)
    return torch.einsum("bhqk,bhkd->bhqd", p, v)
```

```python
import sys

NAME = "standalone__gqa_softmax__near_ridge"
out = []
def A(s): out.append("    " + s)
def L(s): out.append(s + ":")
def C(s): out.append("    ; " + s)

vTID = 0
vQoff = 1
vOoff = 2
vK = 3
vV = 11
vT0 = 15
vQ = 16
vFB = 48
NFB = 6
vM = 72; vMC = 73; vT1 = 74; vS0 = 75
vInv = 79
vS = 80
vO = 144
NV = 208

sW = 28
sG = 29
sQb = 30
sTile = 31
sC = 32
sT = 33
sT2 = 34
sKVb = 35

import math
cval = (128 ** -0.5) * math.log2(math.e)
import struct
chex = "0x%08x" % struct.unpack("<I", struct.pack("<f", cval))[0]

header = open("cdna_kernels/%s.s.ref" % NAME).read().split("; @launch")[0]
out.append(header.rstrip("\n"))
out.append("; @launch grid=(512,1,1) block=(512,1,1) lds=131072")
out.append('.amdgcn_target "amdgcn-amd-amdhsa--gfx950"')
out.append(".text")
out.append(".globl %s_kernel" % NAME)
out.append(".p2align 8")
out.append(".type %s_kernel,@function" % NAME)
L("%s_kernel" % NAME)
A("s_cmp_ge_u32 s2, 512")
A("s_cbranch_scc1 L_end")
A("s_load_dwordx8 s[4:11], s[0:1], 0")
A("v_lshrrev_b32 v%d, 6, v0" % vT0)
A("v_and_b32 v0, 63, v0")
A("s_nop 0")
A("v_readfirstlane_b32 s%d, v%d" % (sW, vT0))
A("s_mov_b32 s%d, %s" % (sC, chex))
A("s_waitcnt lgkmcnt(0)")
for (d, p, n) in ((12, 4, 0x8000000), (16, 6, 0x2000000), (20, 8, 0x2000000), (24, 10, 0x8000000)):
    A("s_mov_b32 s%d, s%d" % (d, p))
    A("s_mov_b32 s%d, s%d" % (d + 1, p + 1))
    A("s_mov_b32 s%d, 0x%x" % (d + 2, n))
    A("s_mov_b32 s%d, 0x00020000" % (d + 3))
vA = vS; vB = vS + 1; vKd = vS + 2; vVd = vS + 3; vP = vS + 4; vR4 = vS + 5
A("v_and_b32 v%d, 15, v0" % vP)
A("v_lshrrev_b32 v%d, 4, v0" % vR4)
A("s_and_b32 s%d, s%d, 3" % (sT, sW))
A("s_lshl_b32 s%d, s%d, 2" % (sT, sT))
A("v_add_u32 v%d, s%d, v%d" % (vA, sT, vR4))
A("v_xor_b32 v%d, v%d, v%d" % (vA, vA, vP))
A("v_lshlrev_b32 v%d, 4, v%d" % (vA, vA))
A("v_lshl_add_u32 v%d, v%d, 8, v%d" % (vKd, vR4, vA))
A("v_lshlrev_b32 v%d, 2, v%d" % (vB, vR4))
A("v_xor_b32 v%d, v%d, v%d" % (vB, vB, vP))
A("v_lshlrev_b32 v%d, 4, v%d" % (vB, vB))
A("v_lshl_add_u32 v%d, v%d, 8, v%d" % (vVd, vR4, vB))
A("s_lshl_b32 s%d, s2, 16" % sKVb)
A("s_lshl_b32 s%d, s%d, 10" % (sT, sW))
A("s_add_u32 s%d, s%d, s%d" % (sKVb, sKVb, sT))
A("s_mov_b32 s%d, s%d" % (sT2, sT))
for j in range(8):
    A("s_add_u32 m0, s%d, %d" % (sT2, j * 8192))
    A("s_add_u32 s%d, s%d, %d" % (sT, sKVb, j * 8192))
    A("buffer_load_dwordx4 v%d, s[16:19], s%d offen lds" % (vKd, sT))
    A("s_add_u32 m0, s%d, %d" % (sT2, 65536 + j * 8192))
    A("s_nop 0")
    A("buffer_load_dwordx4 v%d, s[20:23], s%d offen lds" % (vVd, sT))
vN = vS + 6; vH = vS + 7
A("v_and_b32 v%d, 31, v0" % vN)
A("v_lshrrev_b32 v%d, 5, v0" % vH)
A("v_lshlrev_b32 v%d, 4, v%d" % (vA, vH))
A("v_lshl_add_u32 v%d, v%d, 8, v%d" % (vQoff, vN, vA))
A("v_lshlrev_b32 v%d, 5, v%d" % (vA, vH))
A("v_lshl_add_u32 v%d, v%d, 8, v%d" % (vOoff, vN, vA))
A("v_and_b32 v%d, 15, v%d" % (vB, vN))
for f in range(8):
    A("v_add_u32 v%d, %d, v%d" % (vA, 2 * f, vH))
    A("v_xor_b32 v%d, v%d, v%d" % (vA, vA, vB))
    A("v_lshlrev_b32 v%d, 4, v%d" % (vA, vA))
    A("v_lshl_add_u32 v%d, v%d, 8, v%d" % (vK + f, vN, vA))
vI2 = vS + 8; vQq = vS + 9; vDH = vS + 10
A("v_lshrrev_b32 v%d, 2, v%d" % (vI2, vP))
A("v_and_b32 v%d, 3, v%d" % (vQq, vP))
A("v_and_b32 v%d, 1, v%d" % (vDH, vR4))
for dt in range(4):
    A("v_and_b32 v%d, 1, v%d" % (vA, vQq))
    A("v_lshl_add_u32 v%d, v%d, 1, v%d" % (vA, vA, vDH))
    A("v_add_u32 v%d, %d, v%d" % (vA, dt * 4, vA))
    A("v_lshlrev_b32 v%d, 2, v%d" % (vB, vI2))
    A("v_xor_b32 v%d, v%d, v%d" % (vA, vA, vB))
    A("v_lshlrev_b32 v%d, 4, v%d" % (vA, vA))
    A("v_lshrrev_b32 v%d, 1, v%d" % (vB, vQq))
    A("v_lshl_add_u32 v%d, v%d, 3, v%d" % (vA, vB, vA))
    A("v_lshl_add_u32 v%d, v%d, 2, v%d" % (vB, vH, vI2))
    A("v_lshl_add_u32 v%d, v%d, 8, v%d" % (vA, vB, vA))
    A("v_add_u32 v%d, 0x10000, v%d" % (vV + dt, vA))
A("s_lshl_b32 s%d, s2, 18" % sQb)
A("s_lshl_b32 s%d, s%d, 15" % (sT, sW))
A("s_add_u32 s%d, s%d, s%d" % (sQb, sQb, sT))
def qloads(sbase):
    for f in range(8):
        A("buffer_load_dwordx4 v[%d:%d], v%d, s[12:15], s%d offen offset:%d" % (vQ + 4 * f, vQ + 4 * f + 3, vQoff, sbase, f * 32))
qloads(sQb)
A("s_mov_b32 s%d, 0" % sTile)
A("s_waitcnt vmcnt(0)")
A("s_barrier")
L("L_tile")
A("s_waitcnt vmcnt(8)")
def kread(j):
    kt, f = j // 8, j % 8
    fb = vFB + 4 * (j % NFB)
    A("ds_read_b128 v[%d:%d], v%d offset:%d" % (fb, fb + 3, vK + f, kt * 8192))
PD = 4
for j in range(PD): kread(j)
for j in range(64):
    kt, f = j // 8, j % 8
    if j + PD < 64: kread(j + PD)
    rem = min(PD, 63 - j)
    A("s_waitcnt lgkmcnt(%d)" % rem)
    fb = vFB + 4 * (j % NFB)
    cs = "0" if f == 0 else "v[%d:%d]" % (vS + 16 * kt, vS + 16 * kt + 15)
    A("v_mfma_f32_32x32x16_bf16 v[%d:%d], v[%d:%d], v[%d:%d], %s" % (vS + 16 * kt, vS + 16 * kt + 15, fb, fb + 3, vQ + 4 * f, vQ + 4 * f + 3, cs))
A("s_cmp_ge_u32 s%d, 3" % sTile)
A("s_cbranch_scc1 L_noq")
A("s_add_u32 s%d, s%d, 8192" % (sT, sQb))
qloads(sT)
L("L_noq")
A("s_nop 7")
A("s_nop 7")
A("v_max3_f32 v%d, v%d, v%d, v%d" % (vM, vS, vS + 1, vS + 2))
A("v_max3_f32 v%d, v%d, v%d, v%d" % (vT1, vS + 3, vS + 4, vS + 5))
i = 6
tog = 0
while i + 1 < 128:
    r = vM if tog == 0 else vT1
    A("v_max3_f32 v%d, v%d, v%d, v%d" % (r, r, vS + i, vS + i + 1))
    i += 2; tog ^= 1
A("v_max_f32 v%d, v%d, v%d" % (vM, vM, vT1))
A("v_mov_b32 v%d, v%d" % (vT1, vM))
A("s_nop 1")
A("v_permlane32_swap_b32 v%d, v%d" % (vM, vT1))
A("v_max_f32 v%d, v%d, v%d" % (vM, vM, vT1))
A("v_mul_f32 v%d, s%d, v%d" % (vMC, sC, vM))
for k in range(4): A("v_mov_b32 v%d, 0" % (vS0 + k))
NB = 4
for b in range(0, 128, NB):
    for k in range(NB):
        A("v_fma_f32 v%d, v%d, s%d, -v%d" % (vS + b + k, vS + b + k, sC, vMC))
    for k in range(NB):
        A("v_exp_f32 v%d, v%d" % (vS + b + k, vS + b + k))
    A("s_nop 0")
    for k in range(NB):
        A("v_add_f32 v%d, v%d, v%d" % (vS0 + k, vS0 + k, vS + b + k))
    for k in range(0, NB, 2):
        A("v_cvt_pk_bf16_f32 v%d, v%d, v%d" % (vS + (b + k) // 2, vS + b + k, vS + b + k + 1))
A("v_add_f32 v%d, v%d, v%d" % (vS0, vS0, vS0 + 1))
A("v_add_f32 v%d, v%d, v%d" % (vS0 + 2, vS0 + 2, vS0 + 3))
A("v_add_f32 v%d, v%d, v%d" % (vS0, vS0, vS0 + 2))
A("v_mov_b32 v%d, v%d" % (vT1, vS0))
A("s_nop 1")
A("v_permlane32_swap_b32 v%d, v%d" % (vS0, vT1))
A("v_add_f32 v%d, v%d, v%d" % (vS0, vS0, vT1))
A("v_rcp_f32 v%d, v%d" % (vInv, vS0))
def vread(j):
    ks, dt = j // 4, j % 4
    fb = vFB + 4 * (j % NFB)
    A("ds_read_b64_tr_b16 v[%d:%d], v%d offset:%d" % (fb, fb + 1, vV + dt, ks * 4096))
    A("ds_read_b64_tr_b16 v[%d:%d], v%d offset:%d" % (fb + 2, fb + 3, vV + dt, ks * 4096 + 2048))
for j in range(PD): vread(j)
for j in range(64):
    ks, dt = j // 4, j % 4
    if j + PD < 64: vread(j + PD)
    rem = min(PD, 63 - j)
    A("s_waitcnt lgkmcnt(%d)" % (2 * rem))
    fb = vFB + 4 * (j % NFB)
    cs = "0" if ks == 0 else "v[%d:%d]" % (vO + 16 * dt, vO + 16 * dt + 15)
    A("v_mfma_f32_32x32x16_bf16 v[%d:%d], v[%d:%d], v[%d:%d], %s" % (vO + 16 * dt, vO + 16 * dt + 15, fb, fb + 3, vS + 4 * ks, vS + 4 * ks + 3, cs))
A("s_nop 7")
A("s_nop 7")
for dt in range(4):
    for r in range(16):
        A("v_mul_f32 v%d, v%d, v%d" % (vO + 16 * dt + r, vO + 16 * dt + r, vInv))
    for r in range(0, 16, 2):
        A("v_cvt_pk_bf16_f32 v%d, v%d, v%d" % (vO + 16 * dt + r // 2, vO + 16 * dt + r, vO + 16 * dt + r + 1))
    for j in range(2):
        b = vO + 16 * dt + 4 * j
        A("buffer_store_dwordx4 v[%d:%d], v%d, s[24:27], s%d offen offset:%d" % (b, b + 3, vOoff, sQb, dt * 64 + j * 16))
A("s_add_u32 s%d, s%d, 8192" % (sQb, sQb))
A("s_add_u32 s%d, s%d, 1" % (sTile, sTile))
A("s_cmp_lt_u32 s%d, 4" % sTile)
A("s_cbranch_scc1 L_tile")
L("L_end")
A("s_endpgm")
out.append('.section .rodata,"a"')
out.append(".p2align 6")
out.append(".amdhsa_kernel %s_kernel" % NAME)
out.append("  .amdhsa_next_free_vgpr %d" % NV)
out.append("  .amdhsa_next_free_sgpr 40")
out.append("  .amdhsa_accum_offset %d" % NV)
out.append("  .amdhsa_group_segment_fixed_size 0")
out.append("  .amdhsa_kernarg_size 48")
out.append("  .amdhsa_user_sgpr_count 2")
out.append("  .amdhsa_user_sgpr_kernarg_segment_ptr 1")
out.append("  .amdhsa_system_sgpr_workgroup_id_x 1")
out.append(".end_amdhsa_kernel")
dst = sys.argv[1] if len(sys.argv) > 1 else "cdna_kernels/%s.s" % NAME
open(dst, "w").write("\n".join(out) + "\n")
print("wrote", dst, len(out), "lines")
```

```python
import sys

NAME = "standalone__gqa_softmax__near_ridge"
out = []
def A(s): out.append("    " + s)
def L(s): out.append(s + ":")
def C(s): out.append("    ; " + s)

vTID = 0
vQoff = 1
vOoff = 2
vK = 3
vV = 11
vT0 = 15
vQ = 16
vFB = 48
NFB = 6
vM = 72; vMC = 73; vT1 = 74; vS0 = 75
vInv = 79
vS = 80
vO = 144
NV = 208

sW = 28
sG = 29
sQb = 30
sTile = 31
sC = 32
sT = 33
sT2 = 34
sKVb = 35

import math
cval = (128 ** -0.5) * math.log2(math.e)
import struct
chex = "0x%08x" % struct.unpack("<I", struct.pack("<f", cval))[0]

header = open("cdna_kernels/%s.s.ref" % NAME).read().split("; @launch")[0]
out.append(header.rstrip("\n"))
out.append("; @launch grid=(512,1,1) block=(512,1,1) lds=131072")
out.append('.amdgcn_target "amdgcn-amd-amdhsa--gfx950"')
out.append(".text")
out.append(".globl %s_kernel" % NAME)
out.append(".p2align 8")
out.append(".type %s_kernel,@function" % NAME)
L("%s_kernel" % NAME)
A("s_cmp_ge_u32 s2, 512")
A("s_cbranch_scc1 L_end")
A("s_load_dwordx8 s[4:11], s[0:1], 0")
A("v_lshrrev_b32 v%d, 6, v0" % vT0)
A("v_and_b32 v0, 63, v0")
A("s_nop 0")
A("v_readfirstlane_b32 s%d, v%d" % (sW, vT0))
A("s_mov_b32 s%d, %s" % (sC, chex))
A("s_waitcnt lgkmcnt(0)")
for (d, p, n) in ((12, 4, 0x8000000), (16, 6, 0x2000000), (20, 8, 0x2000000), (24, 10, 0x8000000)):
    A("s_mov_b32 s%d, s%d" % (d, p))
    A("s_mov_b32 s%d, s%d" % (d + 1, p + 1))
    A("s_mov_b32 s%d, 0x%x" % (d + 2, n))
    A("s_mov_b32 s%d, 0x00020000" % (d + 3))
vA = vS; vB = vS + 1; vKd = vS + 2; vVd = vS + 3; vP = vS + 4; vR4 = vS + 5
A("v_and_b32 v%d, 15, v0" % vP)
A("v_lshrrev_b32 v%d, 4, v0" % vR4)
A("s_and_b32 s%d, s%d, 3" % (sT, sW))
A("s_lshl_b32 s%d, s%d, 2" % (sT, sT))
A("v_add_u32 v%d, s%d, v%d" % (vA, sT, vR4))
A("v_xor_b32 v%d, v%d, v%d" % (vA, vA, vP))
A("v_lshlrev_b32 v%d, 4, v%d" % (vA, vA))
A("v_lshl_add_u32 v%d, v%d, 8, v%d" % (vKd, vR4, vA))
A("v_lshlrev_b32 v%d, 2, v%d" % (vB, vR4))
A("v_xor_b32 v%d, v%d, v%d" % (vB, vB, vP))
A("v_lshlrev_b32 v%d, 4, v%d" % (vB, vB))
A("v_lshl_add_u32 v%d, v%d, 8, v%d" % (vVd, vR4, vB))
A("s_lshl_b32 s%d, s2, 16" % sKVb)
A("s_lshl_b32 s%d, s%d, 10" % (sT, sW))
A("s_add_u32 s%d, s%d, s%d" % (sKVb, sKVb, sT))
A("s_mov_b32 s%d, s%d" % (sT2, sT))
for j in range(8):
    A("s_add_u32 m0, s%d, %d" % (sT2, j * 8192))
    A("s_add_u32 s%d, s%d, %d" % (sT, sKVb, j * 8192))
    A("buffer_load_dwordx4 v%d, s[16:19], s%d offen lds" % (vKd, sT))
    A("s_add_u32 m0, s%d, %d" % (sT2, 65536 + j * 8192))
    A("s_nop 0")
    A("buffer_load_dwordx4 v%d, s[20:23], s%d offen lds" % (vVd, sT))
vN = vS + 6; vH = vS + 7
A("v_and_b32 v%d, 31, v0" % vN)
A("v_lshrrev_b32 v%d, 5, v0" % vH)
A("v_lshlrev_b32 v%d, 4, v%d" % (vA, vH))
A("v_lshl_add_u32 v%d, v%d, 8, v%d" % (vQoff, vN, vA))
A("v_lshlrev_b32 v%d, 5, v%d" % (vA, vH))
A("v_lshl_add_u32 v%d, v%d, 8, v%d" % (vOoff, vN, vA))
A("v_and_b32 v%d, 15, v%d" % (vB, vN))
for f in range(8):
    A("v_add_u32 v%d, %d, v%d" % (vA, 2 * f, vH))
    A("v_xor_b32 v%d, v%d, v%d" % (vA, vA, vB))
    A("v_lshlrev_b32 v%d, 4, v%d" % (vA, vA))
    A("v_lshl_add_u32 v%d, v%d, 8, v%d" % (vK + f, vN, vA))
vI2 = vS + 8; vQq = vS + 9; vDH = vS + 10
A("v_lshrrev_b32 v%d, 2, v%d" % (vI2, vP))
A("v_and_b32 v%d, 3, v%d" % (vQq, vP))
A("v_and_b32 v%d, 1, v%d" % (vDH, vR4))
for dt in range(4):
    A("v_and_b32 v%d, 1, v%d" % (vA, vQq))
    A("v_lshl_add_u32 v%d, v%d, 1, v%d" % (vA, vA, vDH))
    A("v_add_u32 v%d, %d, v%d" % (vA, dt * 4, vA))
    A("v_lshlrev_b32 v%d, 2, v%d" % (vB, vI2))
    A("v_xor_b32 v%d, v%d, v%d" % (vA, vA, vB))
    A("v_lshlrev_b32 v%d, 4, v%d" % (vA, vA))
    A("v_lshrrev_b32 v%d, 1, v%d" % (vB, vQq))
    A("v_lshl_add_u32 v%d, v%d, 3, v%d" % (vA, vB, vA))
    A("v_lshl_add_u32 v%d, v%d, 2, v%d" % (vB, vH, vI2))
    A("v_lshl_add_u32 v%d, v%d, 8, v%d" % (vA, vB, vA))
    A("v_add_u32 v%d, 0x10000, v%d" % (vV + dt, vA))
A("s_lshl_b32 s%d, s2, 18" % sQb)
A("s_lshl_b32 s%d, s%d, 15" % (sT, sW))
A("s_add_u32 s%d, s%d, s%d" % (sQb, sQb, sT))
def qloads(sbase):
    for f in range(8):
        A("buffer_load_dwordx4 v[%d:%d], v%d, s[12:15], s%d offen offset:%d" % (vQ + 4 * f, vQ + 4 * f + 3, vQoff, sbase, f * 32))
qloads(sQb)
A("s_mov_b32 s%d, 0" % sTile)
A("s_waitcnt vmcnt(0)")
A("s_barrier")
import os
PRIO = os.environ.get("PRIO", "0")
if PRIO == "1":
    A("s_cmp_lt_u32 s%d, 4" % sW)
    A("s_cbranch_scc1 L_noprio")
    A("s_setprio 1")
    L("L_noprio")
elif PRIO == "2":
    A("s_cmp_ge_u32 s%d, 4" % sW)
    A("s_cbranch_scc1 L_noprio")
    A("s_setprio 1")
    L("L_noprio")
elif PRIO == "3":
    A("s_and_b32 s%d, s%d, 1" % (sT, sW))
    A("s_cmp_eq_u32 s%d, 0" % sT)
    A("s_cbranch_scc1 L_noprio")
    A("s_setprio 1")
    L("L_noprio")
L("L_tile")
A("s_waitcnt vmcnt(8)")
def kread(j):
    kt, f = j // 8, j % 8
    fb = vFB + 4 * (j % NFB)
    A("ds_read_b128 v[%d:%d], v%d offset:%d" % (fb, fb + 3, vK + f, kt * 8192))
PD = 4
for j in range(PD): kread(j)
for j in range(64):
    kt, f = j // 8, j % 8
    if j + PD < 64: kread(j + PD)
    rem = min(PD, 63 - j)
    A("s_waitcnt lgkmcnt(%d)" % rem)
    fb = vFB + 4 * (j % NFB)
    cs = "0" if f == 0 else "v[%d:%d]" % (vS + 16 * kt, vS + 16 * kt + 15)
    A("v_mfma_f32_32x32x16_bf16 v[%d:%d], v[%d:%d], v[%d:%d], %s" % (vS + 16 * kt, vS + 16 * kt + 15, fb, fb + 3, vQ + 4 * f, vQ + 4 * f + 3, cs))
A("s_cmp_ge_u32 s%d, 3" % sTile)
A("s_cbranch_scc1 L_noq")
A("s_add_u32 s%d, s%d, 8192" % (sT, sQb))
qloads(sT)
L("L_noq")
A("s_nop 7")
A("s_nop 7")
A("v_max3_f32 v%d, v%d, v%d, v%d" % (vM, vS, vS + 1, vS + 2))
A("v_max3_f32 v%d, v%d, v%d, v%d" % (vT1, vS + 3, vS + 4, vS + 5))
i = 6
tog = 0
while i + 1 < 128:
    r = vM if tog == 0 else vT1
    A("v_max3_f32 v%d, v%d, v%d, v%d" % (r, r, vS + i, vS + i + 1))
    i += 2; tog ^= 1
A("v_max_f32 v%d, v%d, v%d" % (vM, vM, vT1))
A("v_mov_b32 v%d, v%d" % (vT1, vM))
A("s_nop 1")
A("v_permlane32_swap_b32 v%d, v%d" % (vM, vT1))
A("v_max_f32 v%d, v%d, v%d" % (vM, vM, vT1))
A("v_mul_f32 v%d, s%d, v%d" % (vMC, sC, vM))
for k in range(4): A("v_mov_b32 v%d, 0" % (vS0 + k))
NB = 4
for b in range(0, 128, NB):
    for k in range(NB):
        A("v_fma_f32 v%d, v%d, s%d, -v%d" % (vS + b + k, vS + b + k, sC, vMC))
    for k in range(NB):
        A("v_exp_f32 v%d, v%d" % (vS + b + k, vS + b + k))
    A("s_nop 0")
    for k in range(NB):
        A("v_add_f32 v%d, v%d, v%d" % (vS0 + k, vS0 + k, vS + b + k))
    for k in range(0, NB, 2):
        A("v_cvt_pk_bf16_f32 v%d, v%d, v%d" % (vS + (b + k) // 2, vS + b + k, vS + b + k + 1))
A("v_add_f32 v%d, v%d, v%d" % (vS0, vS0, vS0 + 1))
A("v_add_f32 v%d, v%d, v%d" % (vS0 + 2, vS0 + 2, vS0 + 3))
A("v_add_f32 v%d, v%d, v%d" % (vS0, vS0, vS0 + 2))
A("v_mov_b32 v%d, v%d" % (vT1, vS0))
A("s_nop 1")
A("v_permlane32_swap_b32 v%d, v%d" % (vS0, vT1))
A("v_add_f32 v%d, v%d, v%d" % (vS0, vS0, vT1))
A("v_rcp_f32 v%d, v%d" % (vInv, vS0))
def vread(j):
    ks, dt = j // 4, j % 4
    fb = vFB + 4 * (j % NFB)
    A("ds_read_b64_tr_b16 v[%d:%d], v%d offset:%d" % (fb, fb + 1, vV + dt, ks * 4096))
    A("ds_read_b64_tr_b16 v[%d:%d], v%d offset:%d" % (fb + 2, fb + 3, vV + dt, ks * 4096 + 2048))
for j in range(PD): vread(j)
for j in range(64):
    ks, dt = j // 4, j % 4
    if j + PD < 64: vread(j + PD)
    rem = min(PD, 63 - j)
    A("s_waitcnt lgkmcnt(%d)" % (2 * rem))
    fb = vFB + 4 * (j % NFB)
    cs = "0" if ks == 0 else "v[%d:%d]" % (vO + 16 * dt, vO + 16 * dt + 15)
    A("v_mfma_f32_32x32x16_bf16 v[%d:%d], v[%d:%d], v[%d:%d], %s" % (vO + 16 * dt, vO + 16 * dt + 15, fb, fb + 3, vS + 4 * ks, vS + 4 * ks + 3, cs))
A("s_nop 7")
A("s_nop 7")
for dt in range(4):
    for r in range(16):
        A("v_mul_f32 v%d, v%d, v%d" % (vO + 16 * dt + r, vO + 16 * dt + r, vInv))
    for r in range(0, 16, 2):
        A("v_cvt_pk_bf16_f32 v%d, v%d, v%d" % (vO + 16 * dt + r // 2, vO + 16 * dt + r, vO + 16 * dt + r + 1))
    for j in range(2):
        b = vO + 16 * dt + 4 * j
        A("buffer_store_dwordx4 v[%d:%d], v%d, s[24:27], s%d offen offset:%d" % (b, b + 3, vOoff, sQb, dt * 64 + j * 16))
A("s_add_u32 s%d, s%d, 8192" % (sQb, sQb))
A("s_add_u32 s%d, s%d, 1" % (sTile, sTile))
A("s_cmp_lt_u32 s%d, 4" % sTile)
A("s_cbranch_scc1 L_tile")
L("L_end")
A("s_endpgm")
out.append('.section .rodata,"a"')
out.append(".p2align 6")
out.append(".amdhsa_kernel %s_kernel" % NAME)
out.append("  .amdhsa_next_free_vgpr %d" % NV)
out.append("  .amdhsa_next_free_sgpr 40")
out.append("  .amdhsa_accum_offset %d" % NV)
out.append("  .amdhsa_group_segment_fixed_size 0")
out.append("  .amdhsa_kernarg_size 48")
out.append("  .amdhsa_user_sgpr_count 2")
out.append("  .amdhsa_user_sgpr_kernarg_segment_ptr 1")
out.append("  .amdhsa_system_sgpr_workgroup_id_x 1")
out.append(".end_amdhsa_kernel")
dst = sys.argv[1] if len(sys.argv) > 1 else "cdna_kernels/%s.s" % NAME
open(dst, "w").write("\n".join(out) + "\n")
print("wrote", dst, len(out), "lines")
```

```python
import sys, os
STAMP = os.environ.get("STAMP","0")=="1"
stampn=[0]
sttn=[0]
def STT():
    if not STAMP: return
    k=sttn[0]; sttn[0]+=1
    A("s_memtime s[36:37]")
    A("s_waitcnt lgkmcnt(0)")
    A("s_cmp_eq_u32 s%d, 1" % sTile)
    A("s_cselect_b32 s%d, s36, s%d" % (46+k, 46+k))
    A("s_cmp_eq_u32 s%d, 2" % sTile)
    A("s_cselect_b32 s%d, s36, s%d" % (51+k, 51+k))
def ST(cond_tile=None):
    if not STAMP: return
    k=stampn[0]; stampn[0]+=1
    A("s_memtime s[36:37]")
    A("s_waitcnt lgkmcnt(0)")
    A("s_mov_b32 s%d, s36" % (44+k))

NAME = "standalone__gqa_softmax__near_ridge"
out = []
def A(s): out.append("    " + s)
def L(s): out.append(s + ":")
def C(s): out.append("    ; " + s)

vTID = 0
vQoff = 1
vOoff = 2
vK = 3
vV = 11
vT0 = 15
vQ = 16
vFB = 48
NFB = 6
vM = 72; vMC = 73; vT1 = 74; vS0 = 75
vInv = 79
vS = 80
vO = 144
NV = 208

sW = 28
sG = 29
sQb = 30
sTile = 31
sC = 32
sT = 33
sT2 = 34
sKVb = 35

import math
cval = (128 ** -0.5) * math.log2(math.e)
import struct
chex = "0x%08x" % struct.unpack("<I", struct.pack("<f", cval))[0]

header = open("cdna_kernels/%s.s.ref" % NAME).read().split("; @launch")[0]
out.append(header.rstrip("\n"))
out.append("; @launch grid=(512,1,1) block=(512,1,1) lds=131072")
out.append('.amdgcn_target "amdgcn-amd-amdhsa--gfx950"')
out.append(".text")
out.append(".globl %s_kernel" % NAME)
out.append(".p2align 8")
out.append(".type %s_kernel,@function" % NAME)
L("%s_kernel" % NAME)
A("s_cmp_ge_u32 s2, 512")
A("s_cbranch_scc1 L_end")
A("s_load_dwordx8 s[4:11], s[0:1], 0")
A("v_lshrrev_b32 v%d, 6, v0" % vT0)
A("v_and_b32 v0, 63, v0")
A("s_nop 0")
A("v_readfirstlane_b32 s%d, v%d" % (sW, vT0))
A("s_mov_b32 s%d, %s" % (sC, chex))
A("s_waitcnt lgkmcnt(0)")
ST()
for (d, p, n) in ((12, 4, 0x8000000), (16, 6, 0x2000000), (20, 8, 0x2000000), (24, 10, 0x8000000)):
    A("s_mov_b32 s%d, s%d" % (d, p))
    A("s_mov_b32 s%d, s%d" % (d + 1, p + 1))
    A("s_mov_b32 s%d, 0x%x" % (d + 2, n))
    A("s_mov_b32 s%d, 0x00020000" % (d + 3))
vA = vS; vB = vS + 1; vKd = vS + 2; vVd = vS + 3; vP = vS + 4; vR4 = vS + 5
A("v_and_b32 v%d, 15, v0" % vP)
A("v_lshrrev_b32 v%d, 4, v0" % vR4)
A("s_and_b32 s%d, s%d, 3" % (sT, sW))
A("s_lshl_b32 s%d, s%d, 2" % (sT, sT))
A("v_add_u32 v%d, s%d, v%d" % (vA, sT, vR4))
A("v_xor_b32 v%d, v%d, v%d" % (vA, vA, vP))
A("v_lshlrev_b32 v%d, 4, v%d" % (vA, vA))
A("v_lshl_add_u32 v%d, v%d, 8, v%d" % (vKd, vR4, vA))
A("v_lshlrev_b32 v%d, 2, v%d" % (vB, vR4))
A("v_xor_b32 v%d, v%d, v%d" % (vB, vB, vP))
A("v_lshlrev_b32 v%d, 4, v%d" % (vB, vB))
A("v_lshl_add_u32 v%d, v%d, 8, v%d" % (vVd, vR4, vB))
A("s_lshl_b32 s%d, s2, 16" % sKVb)
A("s_lshl_b32 s%d, s%d, 10" % (sT, sW))
A("s_add_u32 s%d, s%d, s%d" % (sKVb, sKVb, sT))
A("s_mov_b32 s%d, s%d" % (sT2, sT))
for j in range(8):
    A("s_add_u32 m0, s%d, %d" % (sT2, j * 8192))
    A("s_add_u32 s%d, s%d, %d" % (sT, sKVb, j * 8192))
    A("buffer_load_dwordx4 v%d, s[16:19], s%d offen lds" % (vKd, sT))
    A("s_add_u32 m0, s%d, %d" % (sT2, 65536 + j * 8192))
    A("s_nop 0")
    A("buffer_load_dwordx4 v%d, s[20:23], s%d offen lds" % (vVd, sT))
vN = vS + 6; vH = vS + 7
A("v_and_b32 v%d, 31, v0" % vN)
A("v_lshrrev_b32 v%d, 5, v0" % vH)
A("v_lshlrev_b32 v%d, 4, v%d" % (vA, vH))
A("v_lshl_add_u32 v%d, v%d, 8, v%d" % (vQoff, vN, vA))
A("v_lshlrev_b32 v%d, 5, v%d" % (vA, vH))
A("v_lshl_add_u32 v%d, v%d, 8, v%d" % (vOoff, vN, vA))
A("v_and_b32 v%d, 15, v%d" % (vB, vN))
for f in range(8):
    A("v_add_u32 v%d, %d, v%d" % (vA, 2 * f, vH))
    A("v_xor_b32 v%d, v%d, v%d" % (vA, vA, vB))
    A("v_lshlrev_b32 v%d, 4, v%d" % (vA, vA))
    A("v_lshl_add_u32 v%d, v%d, 8, v%d" % (vK + f, vN, vA))
vI2 = vS + 8; vQq = vS + 9; vDH = vS + 10
A("v_lshrrev_b32 v%d, 2, v%d" % (vI2, vP))
A("v_and_b32 v%d, 3, v%d" % (vQq, vP))
A("v_and_b32 v%d, 1, v%d" % (vDH, vR4))
for dt in range(4):
    A("v_and_b32 v%d, 1, v%d" % (vA, vQq))
    A("v_lshl_add_u32 v%d, v%d, 1, v%d" % (vA, vA, vDH))
    A("v_add_u32 v%d, %d, v%d" % (vA, dt * 4, vA))
    A("v_lshlrev_b32 v%d, 2, v%d" % (vB, vI2))
    A("v_xor_b32 v%d, v%d, v%d" % (vA, vA, vB))
    A("v_lshlrev_b32 v%d, 4, v%d" % (vA, vA))
    A("v_lshrrev_b32 v%d, 1, v%d" % (vB, vQq))
    A("v_lshl_add_u32 v%d, v%d, 3, v%d" % (vA, vB, vA))
    A("v_lshl_add_u32 v%d, v%d, 2, v%d" % (vB, vH, vI2))
    A("v_lshl_add_u32 v%d, v%d, 8, v%d" % (vA, vB, vA))
    A("v_add_u32 v%d, 0x10000, v%d" % (vV + dt, vA))
A("s_lshl_b32 s%d, s2, 18" % sQb)
A("s_lshl_b32 s%d, s%d, 15" % (sT, sW))
A("s_add_u32 s%d, s%d, s%d" % (sQb, sQb, sT))
def qloads(sbase):
    for f in range(8):
        A("buffer_load_dwordx4 v[%d:%d], v%d, s[12:15], s%d offen offset:%d" % (vQ + 4 * f, vQ + 4 * f + 3, vQoff, sbase, f * 32))
qloads(sQb)
A("s_mov_b32 s%d, 0" % sTile)
A("s_waitcnt vmcnt(0)")
A("s_barrier")
import os
PRIO = os.environ.get("PRIO", "0")
if PRIO == "1":
    A("s_cmp_lt_u32 s%d, 4" % sW)
    A("s_cbranch_scc1 L_noprio")
    A("s_setprio 1")
    L("L_noprio")
elif PRIO == "2":
    A("s_cmp_ge_u32 s%d, 4" % sW)
    A("s_cbranch_scc1 L_noprio")
    A("s_setprio 1")
    L("L_noprio")
elif PRIO == "3":
    A("s_and_b32 s%d, s%d, 1" % (sT, sW))
    A("s_cmp_eq_u32 s%d, 0" % sT)
    A("s_cbranch_scc1 L_noprio")
    A("s_setprio 1")
    L("L_noprio")
L("L_tile")
A("s_waitcnt vmcnt(8)")
STT()
def kread(j):
    kt, f = j // 8, j % 8
    fb = vFB + 4 * (j % NFB)
    A("ds_read_b128 v[%d:%d], v%d offset:%d" % (fb, fb + 3, vK + f, kt * 8192))
PD = 4
for j in range(PD): kread(j)
for j in range(64):
    kt, f = j // 8, j % 8
    if j + PD < 64: kread(j + PD)
    rem = min(PD, 63 - j)
    A("s_waitcnt lgkmcnt(%d)" % rem)
    fb = vFB + 4 * (j % NFB)
    cs = "0" if f == 0 else "v[%d:%d]" % (vS + 16 * kt, vS + 16 * kt + 15)
    A("v_mfma_f32_32x32x16_bf16 v[%d:%d], v[%d:%d], v[%d:%d], %s" % (vS + 16 * kt, vS + 16 * kt + 15, fb, fb + 3, vQ + 4 * f, vQ + 4 * f + 3, cs))
STT()
A("s_cmp_ge_u32 s%d, 3" % sTile)
A("s_cbranch_scc1 L_noq")
A("s_add_u32 s%d, s%d, 8192" % (sT, sQb))
qloads(sT)
L("L_noq")
A("s_nop 7")
A("s_nop 7")
A("v_max3_f32 v%d, v%d, v%d, v%d" % (vM, vS, vS + 1, vS + 2))
A("v_max3_f32 v%d, v%d, v%d, v%d" % (vT1, vS + 3, vS + 4, vS + 5))
i = 6
tog = 0
while i + 1 < 128:
    r = vM if tog == 0 else vT1
    A("v_max3_f32 v%d, v%d, v%d, v%d" % (r, r, vS + i, vS + i + 1))
    i += 2; tog ^= 1
A("v_max_f32 v%d, v%d, v%d" % (vM, vM, vT1))
A("v_mov_b32 v%d, v%d" % (vT1, vM))
A("s_nop 1")
A("v_permlane32_swap_b32 v%d, v%d" % (vM, vT1))
A("v_max_f32 v%d, v%d, v%d" % (vM, vM, vT1))
A("v_mul_f32 v%d, s%d, v%d" % (vMC, sC, vM))
for k in range(4): A("v_mov_b32 v%d, 0" % (vS0 + k))
NB = 4
for b in range(0, 128, NB):
    for k in range(NB):
        A("v_fma_f32 v%d, v%d, s%d, -v%d" % (vS + b + k, vS + b + k, sC, vMC))
    for k in range(NB):
        A("v_exp_f32 v%d, v%d" % (vS + b + k, vS + b + k))
    A("s_nop 0")
    for k in range(NB):
        A("v_add_f32 v%d, v%d, v%d" % (vS0 + k, vS0 + k, vS + b + k))
    for k in range(0, NB, 2):
        A("v_cvt_pk_bf16_f32 v%d, v%d, v%d" % (vS + (b + k) // 2, vS + b + k, vS + b + k + 1))
A("v_add_f32 v%d, v%d, v%d" % (vS0, vS0, vS0 + 1))
A("v_add_f32 v%d, v%d, v%d" % (vS0 + 2, vS0 + 2, vS0 + 3))
A("v_add_f32 v%d, v%d, v%d" % (vS0, vS0, vS0 + 2))
A("v_mov_b32 v%d, v%d" % (vT1, vS0))
A("s_nop 1")
A("v_permlane32_swap_b32 v%d, v%d" % (vS0, vT1))
A("v_add_f32 v%d, v%d, v%d" % (vS0, vS0, vT1))
A("v_rcp_f32 v%d, v%d" % (vInv, vS0))
STT()
def vread(j):
    ks, dt = j // 4, j % 4
    fb = vFB + 4 * (j % NFB)
    A("ds_read_b64_tr_b16 v[%d:%d], v%d offset:%d" % (fb, fb + 1, vV + dt, ks * 4096))
    A("ds_read_b64_tr_b16 v[%d:%d], v%d offset:%d" % (fb + 2, fb + 3, vV + dt, ks * 4096 + 2048))
for j in range(PD): vread(j)
for j in range(64):
    ks, dt = j // 4, j % 4
    if j + PD < 64: vread(j + PD)
    rem = min(PD, 63 - j)
    A("s_waitcnt lgkmcnt(%d)" % (2 * rem))
    fb = vFB + 4 * (j % NFB)
    cs = "0" if ks == 0 else "v[%d:%d]" % (vO + 16 * dt, vO + 16 * dt + 15)
    A("v_mfma_f32_32x32x16_bf16 v[%d:%d], v[%d:%d], v[%d:%d], %s" % (vO + 16 * dt, vO + 16 * dt + 15, fb, fb + 3, vS + 4 * ks, vS + 4 * ks + 3, cs))
A("s_nop 7")
A("s_nop 7")
STT()
for dt in range(4):
    for r in range(16):
        A("v_mul_f32 v%d, v%d, v%d" % (vO + 16 * dt + r, vO + 16 * dt + r, vInv))
    for r in range(0, 16, 2):
        A("v_cvt_pk_bf16_f32 v%d, v%d, v%d" % (vO + 16 * dt + r // 2, vO + 16 * dt + r, vO + 16 * dt + r + 1))
    for j in range(2):
        b = vO + 16 * dt + 4 * j
        A("buffer_store_dwordx4 v[%d:%d], v%d, s[24:27], s%d offen offset:%d" % (b, b + 3, vOoff, sQb, dt * 64 + j * 16))
STT()
A("s_add_u32 s%d, s%d, 8192" % (sQb, sQb))
A("s_add_u32 s%d, s%d, 1" % (sTile, sTile))
A("s_cmp_lt_u32 s%d, 4" % sTile)
A("s_cbranch_scc1 L_tile")
if STAMP:
    A("s_memtime s[36:37]")
    A("s_waitcnt lgkmcnt(0)")
    A("s_mov_b32 s56, s36")
    A("s_cmp_lg_u32 s2, 0")
    A("s_cbranch_scc1 L_end")
    A("s_and_b32 s%d, s%d, 3" % (sT, sW))
    A("s_cmp_lg_u32 s%d, 0" % sT)
    A("s_cbranch_scc1 L_end")
    A("s_load_dwordx2 s[36:37], s[0:1], 32")
    A("s_waitcnt lgkmcnt(0)")
    A("s_lshr_b32 s%d, s%d, 2" % (sT, sW))
    A("s_lshl_b32 s%d, s%d, 6" % (sT, sT))
    A("v_mov_b32 v1, s%d" % sT)
    for k in range(13):
        A("v_mov_b32 v2, s%d" % (44+k))
        A("v_subrev_u32 v2, s44, v2")
        A("global_store_dword v1, v2, s[36:37] offset:%d" % (4*k))
    A("s_waitcnt vmcnt(0)")
L("L_end")
A("s_endpgm")
out.append('.section .rodata,"a"')
out.append(".p2align 6")
out.append(".amdhsa_kernel %s_kernel" % NAME)
out.append("  .amdhsa_next_free_vgpr %d" % NV)
out.append("  .amdhsa_next_free_sgpr 64")
out.append("  .amdhsa_accum_offset %d" % NV)
out.append("  .amdhsa_group_segment_fixed_size 0")
out.append("  .amdhsa_kernarg_size 48")
out.append("  .amdhsa_user_sgpr_count 2")
out.append("  .amdhsa_user_sgpr_kernarg_segment_ptr 1")
out.append("  .amdhsa_system_sgpr_workgroup_id_x 1")
out.append(".end_amdhsa_kernel")
dst = sys.argv[1] if len(sys.argv) > 1 else "cdna_kernels/%s.s" % NAME
open(dst, "w").write("\n".join(out) + "\n")
print("wrote", dst, len(out), "lines")
```

```python
import sys, os, math, struct

NAME = "standalone__gqa_softmax__near_ridge"
STAMP = os.environ.get("STAMP", "0") == "1"
PRIO = os.environ.get("PRIO", "0")

vQoff = 1
vStR = 2
vK = 3
vV = 11
vT0 = 15
vQ = 16
vFB = 80
NFB = 6
vM = 104; vMC = 105; vT1 = 106; vS0 = 107
vInv = 111
vS = 112
vO = 176
vStW = 240
vGo = 244
vKd = 245; vVd = 246
NV = 248

sW = 28; sIt = 29; sQb = 30; sC = 32; sT = 33; sT2 = 34; sKVb = 35; sQt = 38; sQt2 = 39; sLds = 40

cval = (128 ** -0.5) * math.log2(math.e)
chex = "0x%08x" % struct.unpack("<I", struct.pack("<f", cval))[0]

class Em:
    def __init__(self): self.out = []
    def A(self, s): self.out.append("    " + s)
    def L(self, s): self.out.append(s + ":")

class Sim:
    def __init__(self): self.q = []
    def issue(self, tag, n=1): self.q += [tag] * n
    def need(self, tag):
        idx = [i for i, t in enumerate(self.q) if t == tag]
        if not idx: return 63
        last = idx[-1]
        allowed = len(self.q) - 1 - last
        self.q = self.q[last + 1:]
        return min(allowed, 63)

def qloads(e, sim, buf, sbase, tag):
    for f in range(8):
        r = vQ + 32 * buf + 4 * f
        e.A("buffer_load_dwordx4 v[%d:%d], v%d, s[12:15], s%d offen offset:%d" % (r, r + 3, vQoff, sbase, f * 32))
    sim.issue(tag, 8)

def dma(e, sim, which, sbase_reg):
    for j in range(8):
        off = (65536 if which == 'V' else 0) + j * 8192
        e.A("s_add_u32 m0, s%d, %d" % (sLds, off))
        e.A("s_add_u32 s%d, s%d, %d" % (sT, sbase_reg, j * 8192))
        if which == 'K':
            e.A("buffer_load_dwordx4 v%d, s[16:19], s%d offen lds" % (vKd, sT))
        else:
            e.A("buffer_load_dwordx4 v%d, s[20:23], s%d offen lds" % (vVd, sT))
    sim.issue(which, 8)

def body(e, sim, counts, rec):
    ci = [0]
    def W(tag):
        n = sim.need(tag)
        if rec is not None: rec.append(n)
        c = counts[ci[0]] if counts else n
        ci[0] += 1
        e.A("s_waitcnt vmcnt(%d)" % c)
    PD = 4
    for t in range(4):
        buf = t % 2
        qb = vQ + 32 * buf
        W("Q%d" % t)
        if t == 0:
            W("K")
            e.A("s_barrier")
        def kread(j):
            kt, f = j // 8, j % 8
            fb = vFB + 4 * (j % NFB)
            e.A("ds_read_b128 v[%d:%d], v%d offset:%d" % (fb, fb + 3, vK + f, kt * 8192))
        for j in range(PD): kread(j)
        for j in range(64):
            kt, f = j // 8, j % 8
            if j + PD < 64: kread(j + PD)
            e.A("s_waitcnt lgkmcnt(%d)" % min(PD, 63 - j))
            fb = vFB + 4 * (j % NFB)
            cs = "0" if f == 0 else "v[%d:%d]" % (vS + 16 * kt, vS + 16 * kt + 15)
            e.A("v_mfma_f32_32x32x16_bf16 v[%d:%d], v[%d:%d], v[%d:%d], %s" % (vS + 16 * kt, vS + 16 * kt + 15, fb, fb + 3, qb + 4 * f, qb + 4 * f + 3, cs))
        if t == 3:
            e.A("s_barrier")
            e.A("s_add_u32 s%d, s%d, 0x1000000" % (sT2, sKVb))
            dma(e, sim, 'K', sT2)
        if t < 2:
            e.A("s_add_u32 s%d, s%d, %d" % (sT2, sQb, (t + 2) * 8192))
            qloads(e, sim, buf, sT2, "Q%d" % (t + 2))
        else:
            e.A("s_add_u32 s%d, s%d, 0x%x" % (sT2, sQb, 0x4000000 + (t - 2) * 8192))
            qloads(e, sim, buf, sT2, "Q%d" % (t - 2))
        e.A("s_nop 7")
        e.A("v_max3_f32 v%d, v%d, v%d, v%d" % (vM, vS, vS + 1, vS + 2))
        e.A("v_max3_f32 v%d, v%d, v%d, v%d" % (vT1, vS + 3, vS + 4, vS + 5))
        i = 6; tog = 0
        while i + 1 < 128:
            r = vM if tog == 0 else vT1
            e.A("v_max3_f32 v%d, v%d, v%d, v%d" % (r, r, vS + i, vS + i + 1))
            i += 2; tog ^= 1
        e.A("v_max_f32 v%d, v%d, v%d" % (vM, vM, vT1))
        e.A("v_mov_b32 v%d, v%d" % (vT1, vM))
        e.A("s_nop 1")
        e.A("v_permlane32_swap_b32 v%d, v%d" % (vM, vT1))
        e.A("v_max_f32 v%d, v%d, v%d" % (vM, vM, vT1))
        e.A("v_mul_f32 v%d, s%d, v%d" % (vMC, sC, vM))
        for k in range(4): e.A("v_mov_b32 v%d, 0" % (vS0 + k))
        NB = 4
        for b in range(0, 128, NB):
            for k in range(NB): e.A("v_fma_f32 v%d, v%d, s%d, -v%d" % (vS + b + k, vS + b + k, sC, vMC))
            for k in range(NB): e.A("v_exp_f32 v%d, v%d" % (vS + b + k, vS + b + k))
            e.A("s_nop 0")
            for k in range(NB): e.A("v_add_f32 v%d, v%d, v%d" % (vS0 + k, vS0 + k, vS + b + k))
            for k in range(0, NB, 2): e.A("v_cvt_pk_bf16_f32 v%d, v%d, v%d" % (vS + (b + k) // 2, vS + b + k, vS + b + k + 1))
        e.A("v_add_f32 v%d, v%d, v%d" % (vS0, vS0, vS0 + 1))
        e.A("v_add_f32 v%d, v%d, v%d" % (vS0 + 2, vS0 + 2, vS0 + 3))
        e.A("v_add_f32 v%d, v%d, v%d" % (vS0, vS0, vS0 + 2))
        e.A("v_mov_b32 v%d, v%d" % (vT1, vS0))
        e.A("s_nop 1")
        e.A("v_permlane32_swap_b32 v%d, v%d" % (vS0, vT1))
        e.A("v_add_f32 v%d, v%d, v%d" % (vS0, vS0, vT1))
        e.A("v_rcp_f32 v%d, v%d" % (vInv, vS0))
        if t == 0:
            W("V")
            e.A("s_barrier")
        def vread(j):
            ks, dt = j // 4, j % 4
            fb = vFB + 4 * (j % NFB)
            e.A("ds_read_b64_tr_b16 v[%d:%d], v%d offset:%d" % (fb, fb + 1, vV + dt, ks * 4096))
            e.A("ds_read_b64_tr_b16 v[%d:%d], v%d offset:%d" % (fb + 2, fb + 3, vV + dt, ks * 4096 + 2048))
        for j in range(PD): vread(j)
        for j in range(64):
            ks, dt = j // 4, j % 4
            if j + PD < 64: vread(j + PD)
            e.A("s_waitcnt lgkmcnt(%d)" % (2 * min(PD, 63 - j)))
            fb = vFB + 4 * (j % NFB)
            cs = "0" if ks == 0 else "v[%d:%d]" % (vO + 16 * dt, vO + 16 * dt + 15)
            e.A("v_mfma_f32_32x32x16_bf16 v[%d:%d], v[%d:%d], v[%d:%d], %s" % (vO + 16 * dt, vO + 16 * dt + 15, fb, fb + 3, vS + 4 * ks, vS + 4 * ks + 3, cs))
        if t == 3:
            e.A("s_barrier")
            e.A("s_add_u32 s%d, s%d, 0x1000000" % (sT2, sKVb))
            dma(e, sim, 'V', sT2)
        else:
            e.A("s_nop 7")
            e.A("s_nop 7")
        e.A("s_add_u32 s%d, s%d, %d" % (sQt, sQb, t * 8192))
        e.A("s_add_u32 s%d, s%d, %d" % (sQt2, sQb, t * 8192 + 4096))
        for hf in range(2):
            for dt in (2 * hf, 2 * hf + 1):
                for r in range(16):
                    e.A("v_mul_f32 v%d, v%d, v%d" % (vO + 16 * dt + r, vO + 16 * dt + r, vInv))
                for r in range(0, 16, 2):
                    e.A("v_cvt_pk_bf16_f32 v%d, v%d, v%d" % (vO + 16 * dt + r // 2, vO + 16 * dt + r, vO + 16 * dt + r + 1))
                for j in range(2):
                    b = vO + 16 * dt + 4 * j
                    e.A("ds_write_b128 v%d, v[%d:%d]" % (vStW + 2 * (dt - 2 * hf) + j, b, b + 3))
            e.A("s_waitcnt lgkmcnt(0)")
            for it in range(4):
                b = vFB + 4 * it
                e.A("ds_read_b128 v[%d:%d], v%d offset:%d" % (b, b + 3, vStR, it * 1024))
            for it in range(4):
                b = vFB + 4 * it
                e.A("s_waitcnt lgkmcnt(%d)" % (3 - it))
                e.A("buffer_store_dwordx4 v[%d:%d], v%d, s[24:27], s%d offen offset:%d" % (b, b + 3, vGo, sQt if it < 2 else sQt2, (it % 2) * 2048 + hf * 128))
            sim.issue("st", 4)

def main():
    e = Em(); A = e.A; L = e.L
    header = open("cdna_kernels/%s.s.ref" % NAME).read().split("; @launch")[0]
    e.out.append(header.rstrip("\n"))
    e.out.append("; @launch grid=(256,1,1) block=(512,1,1) lds=163840")
    e.out.append('.amdgcn_target "amdgcn-amd-amdhsa--gfx950"')
    e.out.append(".text")
    e.out.append(".globl %s_kernel" % NAME)
    e.out.append(".p2align 8")
    e.out.append(".type %s_kernel,@function" % NAME)
    L("%s_kernel" % NAME)
    A("s_cmp_ge_u32 s2, 256")
    A("s_cbranch_scc1 L_end")
    A("s_load_dwordx8 s[4:11], s[0:1], 0")
    A("v_lshrrev_b32 v%d, 6, v0" % vT0)
    A("v_and_b32 v0, 63, v0")
    A("s_nop 0")
    A("v_readfirstlane_b32 s%d, v%d" % (sW, vT0))
    A("s_mov_b32 s%d, %s" % (sC, chex))
    A("s_waitcnt lgkmcnt(0)")
    for (d, p, n) in ((12, 4, 0x8000000), (16, 6, 0x2000000), (20, 8, 0x2000000), (24, 10, 0x8000000)):
        A("s_mov_b32 s%d, s%d" % (d, p)); A("s_mov_b32 s%d, s%d" % (d + 1, p + 1))
        A("s_mov_b32 s%d, 0x%x" % (d + 2, n)); A("s_mov_b32 s%d, 0x00020000" % (d + 3))
    vA = vS; vB = vS + 1; vP = vS + 4; vR4 = vS + 5
    A("v_and_b32 v%d, 15, v0" % vP)
    A("v_lshrrev_b32 v%d, 4, v0" % vR4)
    A("s_and_b32 s%d, s%d, 3" % (sT, sW))
    A("s_lshl_b32 s%d, s%d, 2" % (sT, sT))
    A("v_add_u32 v%d, s%d, v%d" % (vA, sT, vR4))
    A("v_xor_b32 v%d, v%d, v%d" % (vA, vA, vP))
    A("v_lshlrev_b32 v%d, 4, v%d" % (vA, vA))
    A("v_lshl_add_u32 v%d, v%d, 8, v%d" % (vKd, vR4, vA))
    A("v_lshlrev_b32 v%d, 2, v%d" % (vB, vR4))
    A("v_xor_b32 v%d, v%d, v%d" % (vB, vB, vP))
    A("v_lshlrev_b32 v%d, 4, v%d" % (vB, vB))
    A("v_lshl_add_u32 v%d, v%d, 8, v%d" % (vVd, vR4, vB))
    A("s_lshl_b32 s%d, s2, 16" % sKVb)
    A("s_lshl_b32 s%d, s%d, 10" % (sLds, sW))
    A("s_add_u32 s%d, s%d, s%d" % (sKVb, sKVb, sLds))
    A("s_lshl_b32 s%d, s2, 18" % sQb)
    A("s_lshl_b32 s%d, s%d, 15" % (sT, sW))
    A("s_add_u32 s%d, s%d, s%d" % (sQb, sQb, sT))
    vN = vS + 6; vH = vS + 7
    A("v_and_b32 v%d, 31, v0" % vN)
    A("v_lshrrev_b32 v%d, 5, v0" % vH)
    A("v_lshlrev_b32 v%d, 4, v%d" % (vA, vH))
    A("v_lshl_add_u32 v%d, v%d, 8, v%d" % (vQoff, vN, vA))
    sim = Sim()
    dma(e, sim, 'K', sKVb)
    qloads(e, sim, 0, sQb, "Q0")
    dma(e, sim, 'V', sKVb)
    A("s_add_u32 s%d, s%d, 8192" % (sT2, sQb))
    qloads(e, sim, 1, sT2, "Q1")
    A("v_and_b32 v%d, 15, v%d" % (vB, vN))
    for f in range(8):
        A("v_add_u32 v%d, %d, v%d" % (vA, 2 * f, vH))
        A("v_xor_b32 v%d, v%d, v%d" % (vA, vA, vB))
        A("v_lshlrev_b32 v%d, 4, v%d" % (vA, vA))
        A("v_lshl_add_u32 v%d, v%d, 8, v%d" % (vK + f, vN, vA))
    vI2 = vS + 8; vQq = vS + 9; vDH = vS + 10
    A("v_lshrrev_b32 v%d, 2, v%d" % (vI2, vP))
    A("v_and_b32 v%d, 3, v%d" % (vQq, vP))
    A("v_and_b32 v%d, 1, v%d" % (vDH, vR4))
    for dt in range(4):
        A("v_and_b32 v%d, 1, v%d" % (vA, vQq))
        A("v_lshl_add_u32 v%d, v%d, 1, v%d" % (vA, vA, vDH))
        A("v_add_u32 v%d, %d, v%d" % (vA, dt * 4, vA))
        A("v_lshlrev_b32 v%d, 2, v%d" % (vB, vI2))
        A("v_xor_b32 v%d, v%d, v%d" % (vA, vA, vB))
        A("v_lshlrev_b32 v%d, 4, v%d" % (vA, vA))
        A("v_lshrrev_b32 v%d, 1, v%d" % (vB, vQq))
        A("v_lshl_add_u32 v%d, v%d, 3, v%d" % (vA, vB, vA))
        A("v_lshl_add_u32 v%d, v%d, 2, v%d" % (vB, vH, vI2))
        A("v_lshl_add_u32 v%d, v%d, 8, v%d" % (vA, vB, vA))
        A("v_add_u32 v%d, 0x10000, v%d" % (vV + dt, vA))
    A("s_lshl_b32 s%d, s%d, 12" % (sT, sW))
    A("s_add_u32 s%d, s%d, 0x20000" % (sT, sT))
    A("v_and_b32 v%d, 7, v%d" % (vA, vN))
    A("v_lshlrev_b32 v%d, 1, v%d" % (vB, vH))
    A("v_xor_b32 v%d, v%d, v%d" % (vA, vA, vB))
    A("v_lshlrev_b32 v%d, 4, v%d" % (vA, vA))
    A("v_lshl_add_u32 v%d, v%d, 7, v%d" % (vA, vN, vA))
    A("v_add_u32 v%d, s%d, v%d" % (vStW, sT, vA))
    for idx, k in enumerate((0, 1, 4, 5)):
        if idx: A("v_xor_b32 v%d, %d, v%d" % (vStW + idx, k << 4, vStW))
    A("v_lshrrev_b32 v%d, 3, v0" % vA)
    A("v_and_b32 v%d, 7, v0" % vB)
    A("v_lshlrev_b32 v%d, 4, v%d" % (vGo, vB))
    A("v_lshl_add_u32 v%d, v%d, 8, v%d" % (vGo, vA, vGo))
    A("v_xor_b32 v%d, v%d, v%d" % (vB, vB, vA))
    A("v_lshlrev_b32 v%d, 4, v%d" % (vB, vB))
    A("v_lshl_add_u32 v%d, v%d, 7, v%d" % (vB, vA, vB))
    A("v_add_u32 v%d, s%d, v%d" % (vStR, sT, vB))
    A("s_mov_b32 s%d, 0" % sIt)
    import copy
    s1 = copy.deepcopy(sim)
    recs = []
    for p in range(3):
        rec = []
        body(Em(), s1, None, rec)
        recs.append(rec)
    counts = [min(x) for x in zip(*recs)]
    L("L_group")
    body(e, sim, counts, None)
    A("s_add_u32 s%d, s%d, 0x4000000" % (sQb, sQb))
    A("s_add_u32 s%d, s%d, 0x1000000" % (sKVb, sKVb))
    A("s_add_u32 s%d, s%d, 1" % (sIt, sIt))
    A("s_cmp_lt_u32 s%d, 2" % sIt)
    A("s_cbranch_scc1 L_group")
    L("L_end")
    A("s_endpgm")
    o = e.out
    o.append('.section .rodata,"a"')
    o.append(".p2align 6")
    o.append(".amdhsa_kernel %s_kernel" % NAME)
    o.append("  .amdhsa_next_free_vgpr %d" % NV)
    o.append("  .amdhsa_next_free_sgpr 48")
    o.append("  .amdhsa_accum_offset %d" % NV)
    o.append("  .amdhsa_group_segment_fixed_size 0")
    o.append("  .amdhsa_kernarg_size 48")
    o.append("  .amdhsa_user_sgpr_count 2")
    o.append("  .amdhsa_user_sgpr_kernarg_segment_ptr 1")
    o.append("  .amdhsa_system_sgpr_workgroup_id_x 1")
    o.append(".end_amdhsa_kernel")
    dst = sys.argv[1] if len(sys.argv) > 1 else "cdna_kernels/%s.s" % NAME
    open(dst, "w").write("\n".join(o) + "\n")
    print("wrote", dst, len(o), "lines; counts", counts)
main()
```

```python
import sys, os, math, struct

NAME = "standalone__gqa_softmax__near_ridge"
STAMP = os.environ.get("STAMP", "0") == "1"

vQoff = 1; vStR = 2; vK = 3; vV = 11; vT0 = 15
vQ = 16; vFB = 80; NFB = 6
vM = 104; vMC = 105; vT1 = 106; vS0 = 107; vInv = 111
vS = 112; vO = 176
vStW = 240; vGo = 244; vKd = 245; vVd = 246; vCnt = 247
NV = 248

sW = 28; sIt = 29; sC = 32; sT = 33; sT2 = 34; sKVb = 35; sQt = 38; sQt2 = 39; sLds = 40
sCur = 41; sNxt = 42; sN2 = 43; sStat = 44; sFirst = 45; sGb = 46; sCurG = 47; sNxtG = 30

cval = (128 ** -0.5) * math.log2(math.e)
chex = "0x%08x" % struct.unpack("<I", struct.pack("<f", cval))[0]
CNT_OFF = 131072 + 16384

out = []
def A(s): out.append("    " + s)
def L(s): out.append(s + ":")

def qloads(buf, sbase):
    for f in range(8):
        r = vQ + 32 * buf + 4 * f
        A("buffer_load_dwordx4 v[%d:%d], v%d, s[12:15], s%d offen offset:%d" % (r, r + 3, vQoff, sbase, f * 32))

def dma(which, sbase_reg):
    for j in range(8):
        off = (65536 if which == 'V' else 0) + j * 8192
        A("s_add_u32 m0, s%d, %d" % (sLds, off))
        A("s_add_u32 s%d, s%d, %d" % (sT, sbase_reg, j * 8192))
        A("buffer_load_dwordx4 v%d, s[%d:%d], s%d offen lds" % ((vKd, 16, 19, sT) if which == 'K' else (vVd, 20, 23, sT)))

stn = [0]
def ST():
    if not STAMP: return
    A("s_memtime s[36:37]")
    A("s_waitcnt lgkmcnt(0)")
    A("v_mov_b32 v%d, s36" % vT1)
    A("s_cmp_eq_u32 s2, 0")
    A("s_cselect_b64 exec, 1, 0")
    A("global_store_dword v%d, v%d, s[98:99]" % (vT0, vT1))
    A("s_mov_b64 exec, -1")
    A("v_add_u32 v%d, 4, v%d" % (vT0, vT0))

def tile(buf, tag):
    PD = 4
    qb = vQ + 32 * buf
    ST()
    A("s_waitcnt vmcnt(%d)" % (24 + (6 if STAMP else 0)))
    A("s_cmp_eq_u32 s%d, 0" % sFirst)
    A("s_cbranch_scc1 L_nf1%s" % tag)
    A("s_waitcnt vmcnt(%d)" % (16 + (1 if STAMP else 0)))
    A("s_barrier")
    L("L_nf1%s" % tag)
    A("s_cmp_lg_u32 s%d, 0" % sStat)
    A("s_cbranch_scc1 L_ncl%s" % tag)
    A("s_and_b32 s%d, s%d, 1" % (sT, sCurG))
    A("s_lshl_b32 s%d, s%d, 2" % (sT, sT))
    A("s_add_u32 s%d, s%d, %d" % (sT, sT, CNT_OFF))
    A("v_mov_b32 v%d, s%d" % (vT1, sT))
    A("v_mov_b32 v%d, 1" % vCnt)
    A("s_mov_b64 exec, 1")
    A("ds_add_rtn_u32 v%d, v%d, v%d" % (vCnt, vT1, vCnt))
    A("s_mov_b64 exec, -1")
    L("L_ncl%s" % tag)
    ST()
    def kread(j):
        kt, f = j // 8, j % 8
        fb = vFB + 4 * (j % NFB)
        A("ds_read_b128 v[%d:%d], v%d offset:%d" % (fb, fb + 3, vK + f, kt * 8192))
    for j in range(PD): kread(j)
    for j in range(64):
        kt, f = j // 8, j % 8
        if j + PD < 64: kread(j + PD)
        A("s_waitcnt lgkmcnt(%d)" % min(PD, 63 - j))
        fb = vFB + 4 * (j % NFB)
        cs = "0" if f == 0 else "v[%d:%d]" % (vS + 16 * kt, vS + 16 * kt + 15)
        A("v_mfma_f32_32x32x16_bf16 v[%d:%d], v[%d:%d], v[%d:%d], %s" % (vS + 16 * kt, vS + 16 * kt + 15, fb, fb + 3, qb + 4 * f, qb + 4 * f + 3, cs))
    A("s_cmp_eq_u32 s%d, 0" % sStat)
    A("s_cbranch_scc0 L_st%s" % tag)
    A("v_readfirstlane_b32 s%d, v%d" % (sT, vCnt))
    A("s_add_u32 s%d, s%d, 16" % (sT, sT))
    A("s_cmp_lt_u32 s%d, 32" % sT)
    A("s_cbranch_scc0 L_st%s" % tag)
    A("s_lshl_b32 s%d, s%d, 13" % (sT, sT))
    A("s_add_u32 s%d, s%d, s%d" % (sN2, sGb, sT))
    A("s_branch L_st2%s" % tag)
    L("L_st%s" % tag)
    A("s_lshl_b32 s%d, s%d, 3" % (sT, sStat))
    A("s_add_u32 s%d, s%d, s%d" % (sT, sT, sW))
    A("s_lshl_b32 s%d, s%d, 13" % (sT, sT))
    A("s_add_u32 s%d, s%d, s%d" % (sN2, sGb, sT))
    A("s_add_u32 s%d, s%d, 0x4000000" % (sN2, sN2))
    A("s_add_u32 s%d, s%d, 1" % (sStat, sStat))
    L("L_st2%s" % tag)
    qloads(buf, sN2)
    A("s_cmp_eq_u32 s%d, s%d" % (sNxtG, sCurG))
    A("s_cbranch_scc1 L_nfin1%s" % tag)
    A("s_barrier")
    A("s_add_u32 s%d, s%d, 0x1000000" % (sT2, sKVb))
    dma('K', sT2)
    L("L_nfin1%s" % tag)
    ST()
    A("s_nop 7")
    A("v_max3_f32 v%d, v%d, v%d, v%d" % (vM, vS, vS + 1, vS + 2))
    A("v_max3_f32 v%d, v%d, v%d, v%d" % (vT1, vS + 3, vS + 4, vS + 5))
    i = 6; tog = 0
    while i + 1 < 128:
        r = vM if tog == 0 else vT1
        A("v_max3_f32 v%d, v%d, v%d, v%d" % (r, r, vS + i, vS + i + 1))
        i += 2; tog ^= 1
    A("v_max_f32 v%d, v%d, v%d" % (vM, vM, vT1))
    A("v_mov_b32 v%d, v%d" % (vT1, vM))
    A("s_nop 1")
    A("v_permlane32_swap_b32 v%d, v%d" % (vM, vT1))
    A("v_max_f32 v%d, v%d, v%d" % (vM, vM, vT1))
    A("v_mul_f32 v%d, s%d, v%d" % (vMC, sC, vM))
    for k in range(4): A("v_mov_b32 v%d, 0" % (vS0 + k))
    NB = 4
    for b in range(0, 128, NB):
        for k in range(NB): A("v_fma_f32 v%d, v%d, s%d, -v%d" % (vS + b + k, vS + b + k, sC, vMC))
        for k in range(NB): A("v_exp_f32 v%d, v%d" % (vS + b + k, vS + b + k))
        A("s_nop 0")
        for k in range(NB): A("v_add_f32 v%d, v%d, v%d" % (vS0 + k, vS0 + k, vS + b + k))
        for k in range(0, NB, 2): A("v_cvt_pk_bf16_f32 v%d, v%d, v%d" % (vS + (b + k) // 2, vS + b + k, vS + b + k + 1))
    A("v_add_f32 v%d, v%d, v%d" % (vS0, vS0, vS0 + 1))
    A("v_add_f32 v%d, v%d, v%d" % (vS0 + 2, vS0 + 2, vS0 + 3))
    A("v_add_f32 v%d, v%d, v%d" % (vS0, vS0, vS0 + 2))
    A("v_mov_b32 v%d, v%d" % (vT1, vS0))
    A("s_nop 1")
    A("v_permlane32_swap_b32 v%d, v%d" % (vS0, vT1))
    A("v_add_f32 v%d, v%d, v%d" % (vS0, vS0, vT1))
    A("v_rcp_f32 v%d, v%d" % (vInv, vS0))
    A("s_cmp_eq_u32 s%d, 0" % sFirst)
    A("s_cbranch_scc1 L_nf2%s" % tag)
    A("s_waitcnt vmcnt(%d)" % (16 + (3 if STAMP else 0)))
    A("s_barrier")
    A("s_mov_b32 s%d, 0" % sFirst)
    L("L_nf2%s" % tag)
    ST()
    def vread(j):
        ks, dt = j // 4, j % 4
        fb = vFB + 4 * (j % NFB)
        A("ds_read_b64_tr_b16 v[%d:%d], v%d offset:%d" % (fb, fb + 1, vV + dt, ks * 4096))
        A("ds_read_b64_tr_b16 v[%d:%d], v%d offset:%d" % (fb + 2, fb + 3, vV + dt, ks * 4096 + 2048))
    for j in range(PD): vread(j)
    for j in range(64):
        ks, dt = j // 4, j % 4
        if j + PD < 64: vread(j + PD)
        A("s_waitcnt lgkmcnt(%d)" % (2 * min(PD, 63 - j)))
        fb = vFB + 4 * (j % NFB)
        cs = "0" if ks == 0 else "v[%d:%d]" % (vO + 16 * dt, vO + 16 * dt + 15)
        A("v_mfma_f32_32x32x16_bf16 v[%d:%d], v[%d:%d], v[%d:%d], %s" % (vO + 16 * dt, vO + 16 * dt + 15, fb, fb + 3, vS + 4 * ks, vS + 4 * ks + 3, cs))
    A("s_cmp_eq_u32 s%d, s%d" % (sNxtG, sCurG))
    A("s_cbranch_scc1 L_nfin2%s" % tag)
    A("s_barrier")
    A("s_add_u32 s%d, s%d, 0x1000000" % (sT2, sKVb))
    dma('V', sT2)
    L("L_nfin2%s" % tag)
    ST()
    A("s_nop 7")
    A("s_nop 7")
    A("s_add_u32 s%d, s%d, 4096" % (sQt2, sCur))
    for dt in range(4):
        for r in range(16), :
            pass
        for r in range(16):
            A("v_mul_f32 v%d, v%d, v%d" % (vO + 16 * dt + r, vO + 16 * dt + r, vInv))
        for r in range(0, 16, 2):
            A("v_cvt_pk_bf16_f32 v%d, v%d, v%d" % (vO + 16 * dt + r // 2, vO + 16 * dt + r, vO + 16 * dt + r + 1))
        for j in range(2):
            b = vO + 16 * dt + 4 * j
            A("ds_write_b128 v%d, v[%d:%d]" % (vStW + j, b, b + 3))
        A("s_waitcnt lgkmcnt(0)")
        for it in range(2):
            b = vFB + 4 * it
            A("ds_read_b128 v[%d:%d], v%d offset:%d" % (b, b + 3, vStR, it * 1024))
        for it in range(2):
            b = vFB + 4 * it
            A("s_waitcnt lgkmcnt(%d)" % (1 - it))
            A("buffer_store_dwordx4 v[%d:%d], v%d, s[24:27], s%d offen offset:%d" % (b, b + 3, vGo, sCur if it == 0 else sQt2, dt * 64))
    A("s_mov_b32 s%d, s%d" % (sCur, sNxt))
    A("s_mov_b32 s%d, s%d" % (sNxt, sN2))
    A("s_cmp_eq_u32 s%d, s%d" % (sNxtG, sCurG))
    A("s_cbranch_scc1 L_sg%s" % tag)
    A("s_mov_b32 s%d, s%d" % (sCurG, sNxtG))
    A("s_mov_b32 s%d, 1" % sFirst)
    A("s_mov_b32 s%d, 0" % sStat)
    A("s_add_u32 s%d, s%d, 0x4000000" % (sGb, sGb))
    A("s_add_u32 s%d, s%d, 0x1000000" % (sKVb, sKVb))
    A("s_cmp_ge_u32 s%d, 2" % sCurG)
    A("s_cbranch_scc1 L_end")
    A("s_branch L_sg2%s" % tag)
    L("L_sg%s" % tag)
    A("s_cmp_eq_u32 s%d, 0" % sStat)
    A("s_cbranch_scc1 L_sg2%s" % tag)
    A("s_add_u32 s%d, s%d, 1" % (sNxtG, sCurG))
    L("L_sg2%s" % tag)

header = open("cdna_kernels/%s.s.ref" % NAME).read().split("; @launch")[0]
out.append(header.rstrip("\n"))
out.append("; @launch grid=(256,1,1) block=(512,1,1) lds=%d" % (CNT_OFF + 64))
out.append('.amdgcn_target "amdgcn-amd-amdhsa--gfx950"')
out.append(".text"); out.append(".globl %s_kernel" % NAME); out.append(".p2align 8"); out.append(".type %s_kernel,@function" % NAME)
L("%s_kernel" % NAME)
A("s_cmp_ge_u32 s2, 256")
A("s_cbranch_scc1 L_end")
A("s_load_dwordx8 s[4:11], s[0:1], 0")
if STAMP: A("s_load_dwordx2 s[98:99], s[0:1], 32")
A("v_lshrrev_b32 v%d, 6, v0" % vT0)
A("v_and_b32 v0, 63, v0")
A("s_nop 0")
A("v_readfirstlane_b32 s%d, v%d" % (sW, vT0))
A("s_mov_b32 s%d, %s" % (sC, chex))
A("s_waitcnt lgkmcnt(0)")
if STAMP:
    A("v_lshlrev_b32 v%d, 10, v%d" % (vT0, vT0))
for (d, p, n) in ((12, 4, 0x8000000), (16, 6, 0x2000000), (20, 8, 0x2000000), (24, 10, 0x8000000)):
    A("s_mov_b32 s%d, s%d" % (d, p)); A("s_mov_b32 s%d, s%d" % (d + 1, p + 1))
    A("s_mov_b32 s%d, 0x%x" % (d + 2, n)); A("s_mov_b32 s%d, 0x00020000" % (d + 3))
vA = vS; vB = vS + 1; vP = vS + 4; vR4 = vS + 5
A("v_and_b32 v%d, 15, v0" % vP)
A("v_lshrrev_b32 v%d, 4, v0" % vR4)
A("s_and_b32 s%d, s%d, 3" % (sT, sW))
A("s_lshl_b32 s%d, s%d, 2" % (sT, sT))
A("v_add_u32 v%d, s%d, v%d" % (vA, sT, vR4))
A("v_xor_b32 v%d, v%d, v%d" % (vA, vA, vP))
A("v_lshlrev_b32 v%d, 4, v%d" % (vA, vA))
A("v_lshl_add_u32 v%d, v%d, 8, v%d" % (vKd, vR4, vA))
A("v_lshlrev_b32 v%d, 2, v%d" % (vB, vR4))
A("v_xor_b32 v%d, v%d, v%d" % (vB, vB, vP))
A("v_lshlrev_b32 v%d, 4, v%d" % (vB, vB))
A("v_lshl_add_u32 v%d, v%d, 8, v%d" % (vVd, vR4, vB))
A("s_lshl_b32 s%d, s2, 16" % sKVb)
A("s_lshl_b32 s%d, s%d, 10" % (sLds, sW))
A("s_add_u32 s%d, s%d, s%d" % (sKVb, sKVb, sLds))
A("s_lshl_b32 s%d, s2, 18" % sGb)
vN = vS + 6; vH = vS + 7
A("v_and_b32 v%d, 31, v0" % vN)
A("v_lshrrev_b32 v%d, 5, v0" % vH)
A("v_lshlrev_b32 v%d, 4, v%d" % (vA, vH))
A("v_lshl_add_u32 v%d, v%d, 8, v%d" % (vQoff, vN, vA))
dma('K', sKVb)
A("s_lshl_b32 s%d, s%d, 13" % (sT2, sW))
A("s_add_u32 s%d, s%d, s%d" % (sCur, sGb, sT2))
A("s_add_u32 s%d, s%d, 65536" % (sNxt, sCur))
qloads(0, sCur)
dma('V', sKVb)
qloads(1, sNxt)
A("v_mov_b32 v%d, %d" % (vA, CNT_OFF))
A("v_mov_b32 v%d, 0" % vB)
A("ds_write_b32 v%d, v%d" % (vA, vB))
A("ds_write_b32 v%d, v%d offset:4" % (vA, vB))
A("s_waitcnt lgkmcnt(0)")
A("v_and_b32 v%d, 15, v%d" % (vB, vN))
for f in range(8):
    A("v_add_u32 v%d, %d, v%d" % (vA, 2 * f, vH))
    A("v_xor_b32 v%d, v%d, v%d" % (vA, vA, vB))
    A("v_lshlrev_b32 v%d, 4, v%d" % (vA, vA))
    A("v_lshl_add_u32 v%d, v%d, 8, v%d" % (vK + f, vN, vA))
vI2 = vS + 8; vQq = vS + 9; vDH = vS + 10
A("v_lshrrev_b32 v%d, 2, v%d" % (vI2, vP))
A("v_and_b32 v%d, 3, v%d" % (vQq, vP))
A("v_and_b32 v%d, 1, v%d" % (vDH, vR4))
for dt in range(4):
    A("v_and_b32 v%d, 1, v%d" % (vA, vQq))
    A("v_lshl_add_u32 v%d, v%d, 1, v%d" % (vA, vA, vDH))
    A("v_add_u32 v%d, %d, v%d" % (vA, dt * 4, vA))
    A("v_lshlrev_b32 v%d, 2, v%d" % (vB, vI2))
    A("v_xor_b32 v%d, v%d, v%d" % (vA, vA, vB))
    A("v_lshlrev_b32 v%d, 4, v%d" % (vA, vA))
    A("v_lshrrev_b32 v%d, 1, v%d" % (vB, vQq))
    A("v_lshl_add_u32 v%d, v%d, 3, v%d" % (vA, vB, vA))
    A("v_lshl_add_u32 v%d, v%d, 2, v%d" % (vB, vH, vI2))
    A("v_lshl_add_u32 v%d, v%d, 8, v%d" % (vA, vB, vA))
    A("v_add_u32 v%d, 0x10000, v%d" % (vV + dt, vA))
A("s_lshl_b32 s%d, s%d, 11" % (sT, sW))
A("s_add_u32 s%d, s%d, 0x20000" % (sT, sT))
A("v_lshrrev_b32 v%d, 1, v%d" % (vA, vN))
A("v_and_b32 v%d, 3, v%d" % (vA, vA))
A("v_lshlrev_b32 v%d, 1, v%d" % (vB, vH))
A("v_xor_b32 v%d, v%d, v%d" % (vA, vA, vB))
A("v_lshlrev_b32 v%d, 4, v%d" % (vA, vA))
A("v_lshl_add_u32 v%d, v%d, 6, v%d" % (vA, vN, vA))
A("v_add_u32 v%d, s%d, v%d" % (vStW, sT, vA))
A("v_xor_b32 v%d, 16, v%d" % (vStW + 1, vStW))
A("v_lshrrev_b32 v%d, 2, v0" % vA)
A("v_and_b32 v%d, 3, v0" % vB)
A("v_lshlrev_b32 v%d, 4, v%d" % (vGo, vB))
A("v_lshl_add_u32 v%d, v%d, 8, v%d" % (vGo, vA, vGo))
A("v_lshrrev_b32 v%d, 1, v%d" % (vI2, vA))
A("v_and_b32 v%d, 3, v%d" % (vI2, vI2))
A("v_xor_b32 v%d, v%d, v%d" % (vB, vB, vI2))
A("v_lshlrev_b32 v%d, 4, v%d" % (vB, vB))
A("v_lshl_add_u32 v%d, v%d, 6, v%d" % (vB, vA, vB))
A("v_add_u32 v%d, s%d, v%d" % (vStR, sT, vB))
A("s_mov_b32 s%d, 0" % sCurG)
A("s_mov_b32 s%d, 0" % sNxtG)
A("s_mov_b32 s%d, 0" % sStat)
A("s_mov_b32 s%d, 1" % sFirst)
L("L_loop")
tile(0, "a")
tile(1, "b")
A("s_branch L_loop")
L("L_end")
A("s_endpgm")
out.append('.section .rodata,"a"'); out.append(".p2align 6")
out.append(".amdhsa_kernel %s_kernel" % NAME)
out.append("  .amdhsa_next_free_vgpr %d" % NV)
out.append("  .amdhsa_next_free_sgpr 100")
out.append("  .amdhsa_accum_offset %d" % NV)
out.append("  .amdhsa_group_segment_fixed_size 0")
out.append("  .amdhsa_kernarg_size 48")
out.append("  .amdhsa_user_sgpr_count 2")
out.append("  .amdhsa_user_sgpr_kernarg_segment_ptr 1")
out.append("  .amdhsa_system_sgpr_workgroup_id_x 1")
out.append(".end_amdhsa_kernel")
dst = sys.argv[1] if len(sys.argv) > 1 else "cdna_kernels/%s.s" % NAME
open(dst, "w").write("\n".join(out) + "\n")
print("wrote", dst, len(out), "lines")
```

```python
import sys, os, math, struct

NAME = "standalone__gqa_softmax__near_ridge"
STAMP = os.environ.get("STAMP", "0") == "1"

vQoff = 1; vStR = 2; vK = 3; vV = 11; vT0 = 15
vQ = 16; vFB = 80; NFB = 6
vM = 104; vMC = 105; vT1 = 106; vS0 = 107; vInv = 111
vS = 112; vO = 176
vStW = 240; vGo = 244; vKd = 245; vVd = 246; vCnt = 247
NV = 248

sW = 28; sIt = 29; sC = 32; sT = 33; sT2 = 34; sKVb = 35; sQt = 38; sQt2 = 39; sLds = 40
sCur = 41; sNxt = 42; sN2 = 43; sStat = 44; sFirst = 45; sGb = 46; sCurG = 47; sNxtG = 30

cval = (128 ** -0.5) * math.log2(math.e)
chex = "0x%08x" % struct.unpack("<I", struct.pack("<f", cval))[0]
CNT_OFF = 131072 + 16384

out = []
def A(s): out.append("    " + s)
def L(s): out.append(s + ":")

def qloads(buf, sbase):
    for f in range(8):
        r = vQ + 32 * buf + 4 * f
        A("buffer_load_dwordx4 v[%d:%d], v%d, s[12:15], s%d offen offset:%d" % (r, r + 3, vQoff, sbase, f * 32))

def dma(which, sbase_reg):
    for j in range(8):
        off = (65536 if which == 'V' else 0) + j * 8192
        A("s_add_u32 m0, s%d, %d" % (sLds, off))
        A("s_add_u32 s%d, s%d, %d" % (sT, sbase_reg, j * 8192))
        A("buffer_load_dwordx4 v%d, s[%d:%d], s%d offen lds" % ((vKd, 16, 19, sT) if which == 'K' else (vVd, 20, 23, sT)))

stn = [0]
def ST():
    if not STAMP: return
    A("s_memtime s[36:37]")
    A("s_waitcnt lgkmcnt(0)")
    A("v_mov_b32 v%d, s36" % vT1)
    A("s_cmp_eq_u32 s2, 0")
    A("s_cselect_b64 exec, 1, 0")
    A("global_store_dword v%d, v%d, s[98:99]" % (vT0, vT1))
    A("s_mov_b64 exec, -1")
    A("v_add_u32 v%d, 4, v%d" % (vT0, vT0))

def tile(buf, tag):
    PD = 4
    qb = vQ + 32 * buf
    ST()
    A("s_waitcnt vmcnt(8)")
    A("s_cmp_eq_u32 s%d, 0" % sFirst)
    A("s_cbranch_scc1 L_nf1%s" % tag)
    A("s_waitcnt vmcnt(%d)" % (16 + (1 if STAMP else 0)))
    A("s_barrier")
    L("L_nf1%s" % tag)
    A("s_cmp_lg_u32 s%d, 0" % sStat)
    A("s_cbranch_scc1 L_ncl%s" % tag)
    A("s_and_b32 s%d, s%d, 1" % (sT, sCurG))
    A("s_lshl_b32 s%d, s%d, 2" % (sT, sT))
    A("s_add_u32 s%d, s%d, %d" % (sT, sT, CNT_OFF))
    A("v_mov_b32 v%d, s%d" % (vT1, sT))
    A("v_mov_b32 v%d, 1" % vCnt)
    A("s_mov_b64 exec, 1")
    A("ds_add_rtn_u32 v%d, v%d, v%d" % (vCnt, vT1, vCnt))
    A("s_mov_b64 exec, -1")
    L("L_ncl%s" % tag)
    ST()
    def kread(j):
        kt, f = j // 8, j % 8
        fb = vFB + 4 * (j % NFB)
        A("ds_read_b128 v[%d:%d], v%d offset:%d" % (fb, fb + 3, vK + f, kt * 8192))
    for j in range(PD): kread(j)
    for j in range(64):
        kt, f = j // 8, j % 8
        if j + PD < 64: kread(j + PD)
        A("s_waitcnt lgkmcnt(%d)" % min(PD, 63 - j))
        fb = vFB + 4 * (j % NFB)
        cs = "0" if f == 0 else "v[%d:%d]" % (vS + 16 * kt, vS + 16 * kt + 15)
        A("v_mfma_f32_32x32x16_bf16 v[%d:%d], v[%d:%d], v[%d:%d], %s" % (vS + 16 * kt, vS + 16 * kt + 15, fb, fb + 3, qb + 4 * f, qb + 4 * f + 3, cs))
    A("s_cmp_eq_u32 s%d, 0" % sStat)
    A("s_cbranch_scc0 L_st%s" % tag)
    A("v_readfirstlane_b32 s%d, v%d" % (sT, vCnt))
    A("s_add_u32 s%d, s%d, 8" % (sT, sT))
    A("s_cmp_lt_u32 s%d, 32" % sT)
    A("s_cbranch_scc0 L_st%s" % tag)
    A("s_lshl_b32 s%d, s%d, 13" % (sT, sT))
    A("s_add_u32 s%d, s%d, s%d" % (sN2, sGb, sT))
    A("s_branch L_st2%s" % tag)
    L("L_st%s" % tag)
    A("s_lshl_b32 s%d, s%d, 3" % (sT, sStat))
    A("s_add_u32 s%d, s%d, s%d" % (sT, sT, sW))
    A("s_lshl_b32 s%d, s%d, 13" % (sT, sT))
    A("s_add_u32 s%d, s%d, s%d" % (sN2, sGb, sT))
    A("s_add_u32 s%d, s%d, 0x4000000" % (sN2, sN2))
    A("s_add_u32 s%d, s%d, 1" % (sStat, sStat))
    A("s_add_u32 s%d, s%d, 1" % (sNxtG, sCurG))
    L("L_st2%s" % tag)
    qloads(1 - buf, sN2)
    A("s_cmp_eq_u32 s%d, s%d" % (sNxtG, sCurG))
    A("s_cbranch_scc1 L_nfin1%s" % tag)
    A("s_barrier")
    A("s_add_u32 s%d, s%d, 0x1000000" % (sT2, sKVb))
    dma('K', sT2)
    L("L_nfin1%s" % tag)
    ST()
    A("s_nop 7")
    A("v_max3_f32 v%d, v%d, v%d, v%d" % (vM, vS, vS + 1, vS + 2))
    A("v_max3_f32 v%d, v%d, v%d, v%d" % (vT1, vS + 3, vS + 4, vS + 5))
    i = 6; tog = 0
    while i + 1 < 128:
        r = vM if tog == 0 else vT1
        A("v_max3_f32 v%d, v%d, v%d, v%d" % (r, r, vS + i, vS + i + 1))
        i += 2; tog ^= 1
    A("v_max_f32 v%d, v%d, v%d" % (vM, vM, vT1))
    A("v_mov_b32 v%d, v%d" % (vT1, vM))
    A("s_nop 1")
    A("v_permlane32_swap_b32 v%d, v%d" % (vM, vT1))
    A("v_max_f32 v%d, v%d, v%d" % (vM, vM, vT1))
    A("v_mul_f32 v%d, s%d, v%d" % (vMC, sC, vM))
    for k in range(4): A("v_mov_b32 v%d, 0" % (vS0 + k))
    NB = 4
    for b in range(0, 128, NB):
        for k in range(NB): A("v_fma_f32 v%d, v%d, s%d, -v%d" % (vS + b + k, vS + b + k, sC, vMC))
        for k in range(NB): A("v_exp_f32 v%d, v%d" % (vS + b + k, vS + b + k))
        A("s_nop 0")
        for k in range(NB): A("v_add_f32 v%d, v%d, v%d" % (vS0 + k, vS0 + k, vS + b + k))
        for k in range(0, NB, 2): A("v_cvt_pk_bf16_f32 v%d, v%d, v%d" % (vS + (b + k) // 2, vS + b + k, vS + b + k + 1))
    A("v_add_f32 v%d, v%d, v%d" % (vS0, vS0, vS0 + 1))
    A("v_add_f32 v%d, v%d, v%d" % (vS0 + 2, vS0 + 2, vS0 + 3))
    A("v_add_f32 v%d, v%d, v%d" % (vS0, vS0, vS0 + 2))
    A("v_mov_b32 v%d, v%d" % (vT1, vS0))
    A("s_nop 1")
    A("v_permlane32_swap_b32 v%d, v%d" % (vS0, vT1))
    A("v_add_f32 v%d, v%d, v%d" % (vS0, vS0, vT1))
    A("v_rcp_f32 v%d, v%d" % (vInv, vS0))
    A("s_cmp_eq_u32 s%d, 0" % sFirst)
    A("s_cbranch_scc1 L_nf2%s" % tag)
    A("s_waitcnt vmcnt(8)")
    A("s_barrier")
    A("s_mov_b32 s%d, 0" % sFirst)
    L("L_nf2%s" % tag)
    ST()
    def vread(j):
        ks, dt = j // 4, j % 4
        fb = vFB + 4 * (j % NFB)
        A("ds_read_b64_tr_b16 v[%d:%d], v%d offset:%d" % (fb, fb + 1, vV + dt, ks * 4096))
        A("ds_read_b64_tr_b16 v[%d:%d], v%d offset:%d" % (fb + 2, fb + 3, vV + dt, ks * 4096 + 2048))
    for j in range(PD): vread(j)
    for j in range(64):
        ks, dt = j // 4, j % 4
        if j + PD < 64: vread(j + PD)
        A("s_waitcnt lgkmcnt(%d)" % (2 * min(PD, 63 - j)))
        fb = vFB + 4 * (j % NFB)
        cs = "0" if ks == 0 else "v[%d:%d]" % (vO + 16 * dt, vO + 16 * dt + 15)
        A("v_mfma_f32_32x32x16_bf16 v[%d:%d], v[%d:%d], v[%d:%d], %s" % (vO + 16 * dt, vO + 16 * dt + 15, fb, fb + 3, vS + 4 * ks, vS + 4 * ks + 3, cs))
    A("s_cmp_eq_u32 s%d, s%d" % (sNxtG, sCurG))
    A("s_cbranch_scc1 L_nfin2%s" % tag)
    A("s_barrier")
    A("s_add_u32 s%d, s%d, 0x1000000" % (sT2, sKVb))
    dma('V', sT2)
    L("L_nfin2%s" % tag)
    ST()
    A("s_nop 7")
    A("s_nop 7")
    A("s_add_u32 s%d, s%d, 4096" % (sQt2, sCur))
    for dt in range(4):
        for r in range(16), :
            pass
        for r in range(16):
            A("v_mul_f32 v%d, v%d, v%d" % (vO + 16 * dt + r, vO + 16 * dt + r, vInv))
        for r in range(0, 16, 2):
            A("v_cvt_pk_bf16_f32 v%d, v%d, v%d" % (vO + 16 * dt + r // 2, vO + 16 * dt + r, vO + 16 * dt + r + 1))
        for j in range(2):
            b = vO + 16 * dt + 4 * j
            A("ds_write_b128 v%d, v[%d:%d]" % (vStW + j, b, b + 3))
        A("s_waitcnt lgkmcnt(0)")
        for it in range(2):
            b = vFB + 4 * it
            A("ds_read_b128 v[%d:%d], v%d offset:%d" % (b, b + 3, vStR, it * 1024))
        for it in range(2):
            b = vFB + 4 * it
            A("s_waitcnt lgkmcnt(%d)" % (1 - it))
            A("buffer_store_dwordx4 v[%d:%d], v%d, s[24:27], s%d offen offset:%d" % (b, b + 3, vGo, sCur if it == 0 else sQt2, dt * 64))
    A("s_mov_b32 s%d, s%d" % (sCur, sN2))
    A("s_cmp_eq_u32 s%d, s%d" % (sNxtG, sCurG))
    A("s_cbranch_scc1 L_sg%s" % tag)
    A("s_mov_b32 s%d, s%d" % (sCurG, sNxtG))
    A("s_mov_b32 s%d, 1" % sFirst)
    A("s_mov_b32 s%d, 0" % sStat)
    A("s_add_u32 s%d, s%d, 0x4000000" % (sGb, sGb))
    A("s_add_u32 s%d, s%d, 0x1000000" % (sKVb, sKVb))
    A("s_cmp_ge_u32 s%d, 2" % sCurG)
    A("s_cbranch_scc1 L_end")
    A("s_branch L_sg2%s" % tag)
    L("L_sg%s" % tag)
    A("s_cmp_eq_u32 s%d, 0" % sStat)
    A("s_cbranch_scc1 L_sg2%s" % tag)
    A("s_add_u32 s%d, s%d, 1" % (sNxtG, sCurG))
    L("L_sg2%s" % tag)

header = open("cdna_kernels/%s.s.ref" % NAME).read().split("; @launch")[0]
out.append(header.rstrip("\n"))
out.append("; @launch grid=(256,1,1) block=(512,1,1) lds=%d" % (CNT_OFF + 64))
out.append('.amdgcn_target "amdgcn-amd-amdhsa--gfx950"')
out.append(".text"); out.append(".globl %s_kernel" % NAME); out.append(".p2align 8"); out.append(".type %s_kernel,@function" % NAME)
L("%s_kernel" % NAME)
A("s_cmp_ge_u32 s2, 256")
A("s_cbranch_scc1 L_end")
A("s_load_dwordx8 s[4:11], s[0:1], 0")
if STAMP: A("s_load_dwordx2 s[98:99], s[0:1], 32")
A("v_lshrrev_b32 v%d, 6, v0" % vT0)
A("v_and_b32 v0, 63, v0")
A("s_nop 0")
A("v_readfirstlane_b32 s%d, v%d" % (sW, vT0))
A("s_mov_b32 s%d, %s" % (sC, chex))
A("s_waitcnt lgkmcnt(0)")
if STAMP:
    A("v_lshlrev_b32 v%d, 10, v%d" % (vT0, vT0))
for (d, p, n) in ((12, 4, 0x8000000), (16, 6, 0x2000000), (20, 8, 0x2000000), (24, 10, 0x8000000)):
    A("s_mov_b32 s%d, s%d" % (d, p)); A("s_mov_b32 s%d, s%d" % (d + 1, p + 1))
    A("s_mov_b32 s%d, 0x%x" % (d + 2, n)); A("s_mov_b32 s%d, 0x00020000" % (d + 3))
vA = vS; vB = vS + 1; vP = vS + 4; vR4 = vS + 5
A("v_and_b32 v%d, 15, v0" % vP)
A("v_lshrrev_b32 v%d, 4, v0" % vR4)
A("s_and_b32 s%d, s%d, 3" % (sT, sW))
A("s_lshl_b32 s%d, s%d, 2" % (sT, sT))
A("v_add_u32 v%d, s%d, v%d" % (vA, sT, vR4))
A("v_xor_b32 v%d, v%d, v%d" % (vA, vA, vP))
A("v_lshlrev_b32 v%d, 4, v%d" % (vA, vA))
A("v_lshl_add_u32 v%d, v%d, 8, v%d" % (vKd, vR4, vA))
A("v_lshlrev_b32 v%d, 2, v%d" % (vB, vR4))
A("v_xor_b32 v%d, v%d, v%d" % (vB, vB, vP))
A("v_lshlrev_b32 v%d, 4, v%d" % (vB, vB))
A("v_lshl_add_u32 v%d, v%d, 8, v%d" % (vVd, vR4, vB))
A("s_lshl_b32 s%d, s2, 16" % sKVb)
A("s_lshl_b32 s%d, s%d, 10" % (sLds, sW))
A("s_add_u32 s%d, s%d, s%d" % (sKVb, sKVb, sLds))
A("s_lshl_b32 s%d, s2, 18" % sGb)
vN = vS + 6; vH = vS + 7
A("v_and_b32 v%d, 31, v0" % vN)
A("v_lshrrev_b32 v%d, 5, v0" % vH)
A("v_lshlrev_b32 v%d, 4, v%d" % (vA, vH))
A("v_lshl_add_u32 v%d, v%d, 8, v%d" % (vQoff, vN, vA))
dma('K', sKVb)
A("s_lshl_b32 s%d, s%d, 13" % (sT2, sW))
A("s_add_u32 s%d, s%d, s%d" % (sCur, sGb, sT2))
A("s_add_u32 s%d, s%d, 65536" % (sNxt, sCur))
qloads(0, sCur)
dma('V', sKVb)
A("v_mov_b32 v%d, %d" % (vA, CNT_OFF))
A("v_mov_b32 v%d, 0" % vB)
A("ds_write_b32 v%d, v%d" % (vA, vB))
A("ds_write_b32 v%d, v%d offset:4" % (vA, vB))
A("s_waitcnt lgkmcnt(0)")
A("v_and_b32 v%d, 15, v%d" % (vB, vN))
for f in range(8):
    A("v_add_u32 v%d, %d, v%d" % (vA, 2 * f, vH))
    A("v_xor_b32 v%d, v%d, v%d" % (vA, vA, vB))
    A("v_lshlrev_b32 v%d, 4, v%d" % (vA, vA))
    A("v_lshl_add_u32 v%d, v%d, 8, v%d" % (vK + f, vN, vA))
vI2 = vS + 8; vQq = vS + 9; vDH = vS + 10
A("v_lshrrev_b32 v%d, 2, v%d" % (vI2, vP))
A("v_and_b32 v%d, 3, v%d" % (vQq, vP))
A("v_and_b32 v%d, 1, v%d" % (vDH, vR4))
for dt in range(4):
    A("v_and_b32 v%d, 1, v%d" % (vA, vQq))
    A("v_lshl_add_u32 v%d, v%d, 1, v%d" % (vA, vA, vDH))
    A("v_add_u32 v%d, %d, v%d" % (vA, dt * 4, vA))
    A("v_lshlrev_b32 v%d, 2, v%d" % (vB, vI2))
    A("v_xor_b32 v%d, v%d, v%d" % (vA, vA, vB))
    A("v_lshlrev_b32 v%d, 4, v%d" % (vA, vA))
    A("v_lshrrev_b32 v%d, 1, v%d" % (vB, vQq))
    A("v_lshl_add_u32 v%d, v%d, 3, v%d" % (vA, vB, vA))
    A("v_lshl_add_u32 v%d, v%d, 2, v%d" % (vB, vH, vI2))
    A("v_lshl_add_u32 v%d, v%d, 8, v%d" % (vA, vB, vA))
    A("v_add_u32 v%d, 0x10000, v%d" % (vV + dt, vA))
A("s_lshl_b32 s%d, s%d, 11" % (sT, sW))
A("s_add_u32 s%d, s%d, 0x20000" % (sT, sT))
A("v_lshrrev_b32 v%d, 1, v%d" % (vA, vN))
A("v_and_b32 v%d, 3, v%d" % (vA, vA))
A("v_lshlrev_b32 v%d, 1, v%d" % (vB, vH))
A("v_xor_b32 v%d, v%d, v%d" % (vA, vA, vB))
A("v_lshlrev_b32 v%d, 4, v%d" % (vA, vA))
A("v_lshl_add_u32 v%d, v%d, 6, v%d" % (vA, vN, vA))
A("v_add_u32 v%d, s%d, v%d" % (vStW, sT, vA))
A("v_xor_b32 v%d, 16, v%d" % (vStW + 1, vStW))
A("v_lshrrev_b32 v%d, 2, v0" % vA)
A("v_and_b32 v%d, 3, v0" % vB)
A("v_lshlrev_b32 v%d, 4, v%d" % (vGo, vB))
A("v_lshl_add_u32 v%d, v%d, 8, v%d" % (vGo, vA, vGo))
A("v_lshrrev_b32 v%d, 1, v%d" % (vI2, vA))
A("v_and_b32 v%d, 3, v%d" % (vI2, vI2))
A("v_xor_b32 v%d, v%d, v%d" % (vB, vB, vI2))
A("v_lshlrev_b32 v%d, 4, v%d" % (vB, vB))
A("v_lshl_add_u32 v%d, v%d, 6, v%d" % (vB, vA, vB))
A("v_add_u32 v%d, s%d, v%d" % (vStR, sT, vB))
A("s_mov_b32 s%d, 0" % sCurG)
A("s_mov_b32 s%d, 0" % sNxtG)
A("s_mov_b32 s%d, 0" % sStat)
A("s_mov_b32 s%d, 1" % sFirst)
L("L_loop")
tile(0, "a")
tile(1, "b")
A("s_branch L_loop")
L("L_end")
A("s_endpgm")
out.append('.section .rodata,"a"'); out.append(".p2align 6")
out.append(".amdhsa_kernel %s_kernel" % NAME)
out.append("  .amdhsa_next_free_vgpr %d" % NV)
out.append("  .amdhsa_next_free_sgpr 100")
out.append("  .amdhsa_accum_offset %d" % NV)
out.append("  .amdhsa_group_segment_fixed_size 0")
out.append("  .amdhsa_kernarg_size 48")
out.append("  .amdhsa_user_sgpr_count 2")
out.append("  .amdhsa_user_sgpr_kernarg_segment_ptr 1")
out.append("  .amdhsa_system_sgpr_workgroup_id_x 1")
out.append(".end_amdhsa_kernel")
dst = sys.argv[1] if len(sys.argv) > 1 else "cdna_kernels/%s.s" % NAME
open(dst, "w").write("\n".join(out) + "\n")
print("wrote", dst, len(out), "lines")
```
